```python
import torch

def _softmax(x, axis=-1):
    return torch.softmax(x, dim=axis)
def _gelu(x):
    return torch.nn.functional.gelu(x, approximate="tanh")
def _silu(x):
    return torch.nn.functional.silu(x)
def _sigmoid(x):
    return torch.sigmoid(x)
def _layernorm(x, axis=-1, eps=1e-5):
    m = x.mean(dim=axis, keepdim=True)
    v = x.var(dim=axis, keepdim=True, unbiased=False)
    return (x - m) / torch.sqrt(v + eps)
def _scatter_add(tgt, idx, src, axis=0):
    return tgt.clone().index_add_(axis, idx, src)
def _segment_sum(src, seg, n):
    out = torch.zeros((n,) + src.shape[1:], dtype=src.dtype)
    return out.index_add_(0, seg, src)
def _pad(x, pw):
    flat = tuple(v for pair in reversed(pw) for v in pair)
    return torch.nn.functional.pad(x, flat)

kernel_name = 'gated_mix__softmax_full_mha__sliding_block__prompt'

def setup_inputs():

    _w = (lambda a: (lambda t: t.to(torch.bfloat16) if t.is_floating_point() else t)(torch.as_tensor(a)))
    def _A_setup():
        B, S, D = 1, 2048, 512
        return {
            "x": _w((lambda *s: torch.randn(*s, dtype=torch.bfloat16) * 0.05)(B, S, D)),
            "wqkv": _w((lambda *s: torch.randn(*s, dtype=torch.bfloat16) * 1.6)(D, 3 * D)),
            "wo": _w((lambda *s: torch.randn(*s, dtype=torch.bfloat16) * 0.1)(D, D)),
        }
    _A_in = _A_setup()

    def _B_setup():
        B, S, D = 1, 2048, 512
        return {
            "x": _w((lambda *s: torch.randn(*s, dtype=torch.bfloat16) * 0.05)(B, S, D)),
            "wqkv": _w((lambda *s: torch.randn(*s, dtype=torch.bfloat16) * 1.6)(D, 3 * D)),
            "wo": _w((lambda *s: torch.randn(*s, dtype=torch.bfloat16) * 0.05)(D, D)),
        }
    _B_in = _B_setup()

    return {
        "A_x": _A_in["x"],
        "A_wqkv": _A_in["wqkv"],
        "A_wo": _A_in["wo"],
        "B_x": _B_in["x"],
        "B_wqkv": _B_in["wqkv"],
        "B_wo": _B_in["wo"],
        "gate_w": _w((lambda *s: torch.randn(*s, dtype=torch.bfloat16) * 0.05)(512) * 16.0),
    }

def reference(A_x, A_wqkv, A_wo, B_x, B_wqkv, B_wo, gate_w):
    def _A_ref(x, wqkv, wo):
        B, S, D = x.shape
        H = 32; Dh = D // H
        qkv = (lambda x, *d: x.permute(*d))((x @ wqkv).reshape(B, S, 3, H, Dh), 2, 0, 3, 1, 4)
        q, k, v = qkv[0], qkv[1], qkv[2]
        scale = Dh ** -0.5
        scores = torch.einsum("bhqd,bhkd->bhqk", q, k) * scale
        p = _softmax(scores, axis=-1)
        o = torch.einsum("bhqk,bhkd->bhqd", p, v)
        return (lambda x, *d: x.permute(*d))(o, 0, 2, 1, 3).reshape(B, S, D) @ wo

    def _B_ref(x, wqkv, wo):
        B, S, D = x.shape
        H = 32; Dh = D // H; W = 256
        qkv = (lambda x, *d: x.permute(*d))((x @ wqkv).reshape(B, S, 3, H, Dh), 2, 0, 3, 1, 4)
        q, k, v = qkv[0], qkv[1], qkv[2]
        scores = torch.einsum("bhqd,bhkd->bhqk", q, k) * (Dh ** -0.5)
        idx = torch.arange(S)
        mask = (idx[:, None] - idx[None, :] >= 0) & (idx[:, None] - idx[None, :] < W)
        scores = torch.where(mask[None, None], scores, -1e9)
        p = _softmax(scores, axis=-1)
        o = torch.einsum("bhqk,bhkd->bhqd", p, v)
        return (lambda x, *d: x.permute(*d))(o, 0, 2, 1, 3).reshape(B, S, D) @ wo

    x = A_x
    g = _sigmoid((x * gate_w).sum(-1, keepdims=True))
    a = _A_ref(x, A_wqkv, A_wo)
    b = _B_ref(x, B_wqkv, B_wo)
    return g * a + (1 - g) * b
```

```python
import re

class Asm:
    def __init__(self):
        self.lines = []
        self.uid = 0
    def __call__(self, s=''):
        for l in s.split('\n'):
            l = l.strip()
            if l:
                self.lines.append(('    ' + l) if not l.endswith(':') and not l.startswith('.') else l)
    def raw(self, s):
        self.lines.append(s)
    def label(self, name):
        self.lines.append(name + ':')
    def newlabel(self, base):
        self.uid += 1
        return f'{base}_{self.uid}'
    def c(self, s):
        self.lines.append('    ; ' + s)
    def text(self):
        return '\n'.join(self.lines) + '\n'

def v(a, n=1):
    return f'v{a}' if n == 1 else f'v[{a}:{a+n-1}]'
def s(a, n=1):
    return f's{a}' if n == 1 else f's[{a}:{a+n-1}]'

class DSQ:
    def __init__(self, asm):
        self.a = asm
        self.q = []
    def issue(self, line, tag):
        self.a(line)
        self.q.append(tag)
    def wait(self, tags):
        if not isinstance(tags, (list, tuple, set)):
            tags = [tags]
        idx = -1
        for i, t in enumerate(self.q):
            if t in tags:
                idx = i
        if idx < 0:
            return
        n = len(self.q) - 1 - idx
        assert n <= 15, n
        self.a(f's_waitcnt lgkmcnt({n})')
        self.q = self.q[idx+1:]
    def waitall(self):
        if self.q:
            self.a('s_waitcnt lgkmcnt(0)')
        self.q = []

def _regs(tok):
    tok = tok.strip()
    neg = tok.lstrip('-')
    if neg.startswith('abs(') or neg.startswith('|'):
        neg = neg.replace('abs(', '').replace(')', '').replace('|', '')
    m = re.fullmatch(r'([vsa])(\d+)', neg)
    if m:
        return [(m.group(1), int(m.group(2)))]
    m = re.fullmatch(r'([vsa])\[(\d+):(\d+)\]', neg)
    if m:
        return [(m.group(1), i) for i in range(int(m.group(2)), int(m.group(3)) + 1)]
    if neg == 'vcc':
        return [('s', 'vcc')]
    if neg in ('vcc_lo', 'vcc_hi'):
        return [('s', 'vcc')]
    if neg == 'exec':
        return [('s', 'exec')]
    if neg == 'm0':
        return [('s', 'm0')]
    return []

TRANS = ('v_exp_f32', 'v_log_f32', 'v_rcp_f32', 'v_rsq_f32', 'v_sqrt_f32', 'v_sin_f32', 'v_cos_f32', 'v_exp_f16', 'v_rcp_f16')

class Ins:
    def __init__(self, text, lineno):
        self.text = text
        self.lineno = lineno
        t = text.split(';')[0].strip()
        parts = t.split(None, 1)
        self.op = parts[0]
        ops = []
        if len(parts) > 1:
            rest = parts[1]
            cur = ''; depth = 0
            for ch in rest:
                if ch == '[': depth += 1
                if ch == ']': depth -= 1
                if ch == ',' and depth == 0:
                    ops.append(cur.strip()); cur = ''
                else:
                    cur += ch
            if cur.strip(): ops.append(cur.strip())
            if ops:
                last = ops[-1].split()
                ops[-1] = last[0]
                self.mods = last[1:]
            else:
                self.mods = []
        else:
            self.mods = []
        self.ops = ops
        op = self.op
        self.is_mfma = op.startswith('v_mfma')
        self.is_valu = op.startswith('v_') and not self.is_mfma
        self.is_salu = op.startswith('s_')
        self.is_vmem = op.startswith(('buffer_', 'global_', 'flat_'))
        self.is_ds = op.startswith('ds_')
        self.is_trans = any(op.startswith(x) for x in TRANS)
        self.w = []
        self.r = []
        R = [_regs(o) for o in ops]
        if self.is_mfma:
            self.w = R[0]; self.A = R[1]; self.B = R[2]; self.C = R[3] if len(R) > 3 else []
            self.r = self.A + self.B + self.C
        elif self.is_valu:
            if op.startswith('v_cmp'):
                self.w = R[0]; self.r = sum(R[1:], [])
                if op.startswith('v_cmpx'): self.w = self.w + [('s', 'exec')]
            elif op.startswith(('v_readfirstlane', 'v_readlane')):
                self.w = R[0]; self.r = sum(R[1:], [])
            elif op.startswith(('v_add_co', 'v_sub_co', 'v_addc_co', 'v_subb_co', 'v_subrev_co')):
                self.w = R[0] + R[1]; self.r = sum(R[2:], [])
            elif op.startswith(('v_permlane32_swap', 'v_permlane16_swap')):
                self.w = R[0] + R[1]; self.r = R[0] + R[1]
            elif op.startswith(('v_fmac', 'v_dot2c', 'v_mac')):
                self.w = R[0]; self.r = sum(R, [])
            elif op.startswith('v_nop'):
                pass
            else:
                self.w = R[0]; self.r = sum(R[1:], [])
                if op.startswith('v_cndmask') and len(ops) == 3:
                    self.r.append(('s', 'vcc'))
                if 'dst_unused:UNUSED_PRESERVE' in text: self.r += R[0]
        elif self.is_ds:
            if op.startswith(('ds_read', 'ds_bpermute', 'ds_permute', 'ds_swizzle')):
                self.w = R[0]; self.r = sum(R[1:], [])
            else:
                self.r = sum(R, [])
        elif self.is_vmem:
            if 'lds' in self.mods or op.startswith('global_load_lds'):
                self.r = sum(R, []) + [('s', 'm0')]
            elif '_load' in op:
                self.w = R[0]; self.r = sum(R[1:], [])
            elif 'atomic' in op:
                self.r = sum(R, [])
                if 'sc0' in self.mods: self.w = R[0]
            elif 'store' in op:
                self.r = sum(R, [])
                self.data = R[0] if op.startswith('buffer_') else R[1]
        elif self.is_salu:
            if op.startswith(('s_cmp', 's_cbranch', 's_branch', 's_waitcnt', 's_nop', 's_barrier', 's_endpgm', 's_setprio', 's_sleep', 's_bitcmp')):
                self.r = sum(R, [])
            else:
                self.w = R[0] if R else []
                self.r = sum(R[1:], [])
                if 'saveexec' in op: self.w = self.w + [('s', 'exec')]
    def states(self):
        if self.op == 's_nop':
            return int(self.ops[0], 0) + 1
        return 1

def check_hazards(text):
    ins = []; labels = {}
    for n, line in enumerate(text.split('\n'), 1):
        t = line.split(';')[0].strip()
        if not t: continue
        if t.endswith(':'):
            labels[t[:-1]] = len(ins); continue
        if t.startswith('.'):
            continue
        if not re.match(r'^(v_|s_|ds_|buffer_|global_|flat_)', t): continue
        ins.append(Ins(t, n))
    N = len(ins)
    succ = []
    for i, x in enumerate(ins):
        if x.op == 's_endpgm': succ.append([])
        elif x.op == 's_branch': succ.append([labels[x.ops[0]]] if x.ops[0] in labels else [])
        elif x.op.startswith('s_cbranch'):
            sc = [i + 1] if i + 1 < N else []
            if x.ops[0] in labels: sc.append(labels[x.ops[0]])
            succ.append(sc)
        else: succ.append([i + 1] if i + 1 < N else [])
    probs = []
    def ov(a, b):
        return set(a) & set(b)
    def walk(i, maxd, fn):
        stack = [(j, 0) for j in succ[i]]
        seen = set()
        while stack:
            j, d = stack.pop()
            if d >= maxd or (j, d) in seen or j >= N: continue
            seen.add((j, d))
            stop = fn(ins[j], d)
            if stop: continue
            for k in succ[j]:
                stack.append((k, d + ins[j].states()))
    def rep(p, c, d, need, what):
        probs.append(f'{what}: line {p.lineno} "{p.text}" -> line {c.lineno} "{c.text}" has {d} states, needs {need}')
    for i, p in enumerate(ins):
        if p.is_valu:
            wv = [r for r in p.w if r[0] in 'va']
            ws = [r for r in p.w if r[0] == 's']
            if wv:
                def f(c, d, p=p, wv=wv):
                    if c.is_mfma and ov(wv, c.r) and d < 2: rep(p, c, d, 2, 'VALU->MFMA')
                    if c.op.startswith(('v_permlane32_swap', 'v_permlane16_swap')) and ov(wv, c.r) and d < 2: rep(p, c, d, 2, 'VALU->permlane')
                    if c.is_valu and ('dpp' in c.op or 'row_' in c.text or 'quad_perm' in c.text) and c.ops and ov(wv, _regs(c.ops[1])) and d < 2: rep(p, c, d, 2, 'VALU->DPP')
                    if c.op.startswith(('v_readfirstlane', 'v_readlane')) and ov(wv, c.r) and d < 1: rep(p, c, d, 1, 'VALU->readlane')
                    if p.is_trans and c.is_valu and not c.is_trans and ov(wv, c.r) and d < 1: rep(p, c, d, 1, 'trans->VALU')
                    if p.is_trans and c.is_mfma and ov(wv, c.r) and d < 2: rep(p, c, d, 2, 'trans->MFMA')
                    return False
                walk(i, 2, f)
            if ws:
                def f(c, d, p=p, ws=ws):
                    if c.is_vmem and ov(ws, c.r) and d < 5: rep(p, c, d, 5, 'VALU sgpr->VMEM')
                    if c.is_valu and not c.op.startswith(('v_readlane','v_writelane')) and (ov(ws, c.r)) and d < 2: rep(p, c, d, 2, 'VALU sgpr->VALU')
                    if c.op.startswith(('v_readlane', 'v_writelane')) and ov(ws, c.r) and d < 4: rep(p, c, d, 4, 'VALU sgpr->lane sel')
                    if ('s', 'exec') in ws and (c.is_mfma) and d < 4: rep(p, c, d, 4, 'VALU exec->MFMA')
                    return False
                walk(i, 5, f)
        if p.is_mfma:
            passes = 8 if '32x32' in p.op else 4
            need = 12 if passes == 8 else 8
            needc = 10 if passes == 8 else 6
            war = 7 if passes == 8 else 3
            def f(c, d, p=p):
                if c.is_mfma:
                    if ov(p.w, c.A + c.B) and d < need: rep(p, c, d, need, 'MFMA D->MFMA A/B')
                    if ov(p.w, c.C) and (c.C != p.w or c.op != p.op) and d < needc: rep(p, c, d, needc, 'MFMA D->MFMA C partial')
                    if ov(p.w, c.w) and not (c.C == p.w and c.w == p.w) and d < need: rep(p, c, d, need, 'MFMA D->MFMA D WAW (check)')
                elif c.is_valu or c.is_ds or c.is_vmem:
                    if ov(p.w, c.r + c.w) and d < need: rep(p, c, d, need, 'MFMA D->VALU/mem')
                    if c.is_valu and ov(p.C, c.w) and d < war: rep(p, c, d, war, 'MFMA C WAR')
                return False
            walk(i, need, f)
        if p.is_vmem and 'store' in p.op and ('x4' in p.op or 'x3' in p.op):
            def f(c, d, p=p):
                if (c.is_valu or c.is_mfma) and ov(p.data, c.w) and d < 2: rep(p, c, d, 2, 'store data WAR')
                if (c.is_ds or c.is_vmem) and ov(p.data, c.w) and d < 1: rep(p, c, d, 1, 'store data WAR(ld)')
                return False
            walk(i, 2, f)
        if p.is_salu and ('s', 'm0') in p.w:
            def f(c, d, p=p):
                if c.is_vmem and ('s', 'm0') in c.r and d < 1: rep(p, c, d, 1, 'M0->LDSDMA')
                return False
            walk(i, 1, f)
    return probs
```

```python
from asmlib import *
from layout import *

def srd(a, dst, base, size):
    a(f's_mov_b32 s{dst}, s{base}')
    a(f's_and_b32 s{dst+1}, s{base+1}, 0xffff')
    a(f's_mov_b32 s{dst+2}, {size}')
    a(f's_mov_b32 s{dst+3}, 0x20000')

NSLOT = 4
XREG = 0
WREG = 65536
K1_LDS = 163840

def gen_k1(name='proj_kernel'):
    a = Asm()
    a(f'.globl {name}')
    a('.p2align 8')
    a(f'.type {name},@function')
    a.label(name)
    end = name + '_end'
    a('s_cmp_ge_u32 s2, 256')
    a(f's_cbranch_scc1 {end}')
    a('s_load_dwordx4 s[4:7], s[0:1], 0')
    a('s_load_dwordx2 s[8:9], s[0:1], 16')
    a('s_load_dwordx4 s[12:15], s[0:1], 32')
    a('s_load_dwordx2 s[16:17], s[0:1], 48')
    a('s_load_dwordx2 s[18:19], s[0:1], 72')
    a('v_lshrrev_b32 v2, 6, v0')
    a('v_and_b32 v1, 63, v0')
    a('v_readfirstlane_b32 s40, v2')
    a('s_and_b32 s44, s2, 7')
    a('s_lshr_b32 s45, s2, 3')
    a('s_and_b32 s41, s44, 1')
    a('s_lshl_b32 s41, s41, 3')
    a('s_and_b32 s46, s45, 7')
    a('s_add_u32 s41, s41, s46')
    a('s_lshr_b32 s46, s44, 1')
    a('s_lshl_b32 s46, s46, 2')
    a('s_lshr_b32 s47, s45, 3')
    a('s_add_u32 s46, s46, s47')
    a('s_lshr_b32 s42, s46, 3')
    a('s_and_b32 s43, s46, 7')
    a('s_waitcnt lgkmcnt(0)')
    srd(a, 20, 4, 2048*1024)
    a('s_cmp_eq_u32 s42, 0')
    a('s_cselect_b32 s48, s6, s12')
    a('s_cselect_b32 s49, s7, s13')
    srd(a, 24, 48, 512*3072)
    srd(a, 28, 18, WS_USED)
    a('s_cmp_ge_u32 s40, 4')
    a(f's_cbranch_scc1 {name}_loader')

    a('s_lshr_b32 s50, s40, 1')
    a('s_and_b32 s51, s40, 1')
    a('v_and_b32 v2, 31, v1')
    a('v_lshrrev_b32 v3, 5, v1')
    a('s_lshl_b32 s52, s50, 6')
    a('v_add_u32 v4, s52, v2')
    a('v_bfe_u32 v5, v4, 1, 3')
    a('v_xor_b32 v5, v5, v3')
    a('v_lshlrev_b32 v5, 4, v5')
    a('v_lshl_add_u32 v8, v4, 7, v5')
    a('v_xor_b32 v9, 32, v8')
    a('v_xor_b32 v10, 64, v8')
    a('v_xor_b32 v11, 0x60, v8')
    a('v_bfe_u32 v4, v1, 2, 2')
    a('v_and_b32 v5, 3, v1')
    a('v_bfe_u32 v6, v1, 4, 1')
    a('v_lshlrev_b32 v6, 1, v6')
    a('v_lshrrev_b32 v7, 1, v5')
    a('v_add_u32 v6, v6, v7')
    a('s_lshl_b32 s52, s51, 2')
    a('v_add_u32 v6, s52, v6')
    a('v_bfe_u32 v7, v4, 1, 1')
    a('v_lshlrev_b32 v7, 2, v7')
    a('v_xor_b32 v6, v6, v7')
    a('v_lshlrev_b32 v6, 4, v6')
    a('v_and_b32 v5, 1, v5')
    a('v_lshl_add_u32 v6, v5, 3, v6')
    a('v_lshl_add_u32 v4, v3, 3, v4')
    a('v_lshl_add_u32 v6, v4, 7, v6')
    a(f'v_add_u32 v12, {WREG}, v6')
    a(f'v_add_u32 v13, {WREG+49152}, v6')
    FR = 16
    ACC = 80
    def fset(n): return FR + 20*(n % 3)
    def acc(tt, g): return ACC + 16*(tt*3+g)
    q = DSQ(a)
    def reads(n):
        s_, kk = divmod(n, 4)
        slot = s_ % NSLOT
        f = fset(n)
        out = []
        xo = XREG + slot*16384
        wb = 12 if slot < 2 else 13
        wo = (slot & 1)*24576 + kk*2048
        out.append((f'ds_read_b128 {v(f,4)}, v{8+kk} offset:{xo}', (n,'x0')))
        for g in (0,1,2):
            out.append((f'ds_read_b64_tr_b16 {v(f+8+4*g,2)}, v{wb} offset:{wo+g*8192}', (n,f'w{g}')))
            out.append((f'ds_read_b64_tr_b16 {v(f+10+4*g,2)}, v{wb} offset:{wo+g*8192+512}', (n,f'w{g}')))
        out.append((f'ds_read_b128 {v(f+4,4)}, v{8+kk} offset:{xo+4096}', (n,'x1')))
        return out
    def mfma(n, tt, g, first):
        f = fset(n)
        x = v(f+4*tt, 4); w = v(f+8+4*g, 4); d = v(acc(tt,g), 16)
        c = '0' if first else d
        if g < 2: return f'v_mfma_f32_32x32x16_bf16 {d}, {w}, {x}, {c}'
        return f'v_mfma_f32_32x32x16_bf16 {d}, {x}, {w}, {c}'
    NST = 32
    a('s_barrier')
    for n in (0, 1):
        for line, tag in reads(n): q.issue(line, tag)
    for n in range(NST):
        s_, kk = divmod(n, 4)
        if kk == 2 and s_ < 7:
            q.waitall()
            a('s_barrier')
        rd = reads(n+2) if n+2 < NST else []
        order = [(0,0),(0,1),(0,2),(1,0),(1,1),(1,2)]
        need = {(0,0):['x0','w0'],(0,1):['w1'],(0,2):['w2'],(1,0):['x1'],(1,1):[],(1,2):[]}
        ri = 0
        for mi,(tt,g) in enumerate(order):
            q.wait([(n,t) for t in need[(tt,g)]])
            a(mfma(n, tt, g, n == 0))
            k = 2 if mi < 4 else 0
            for _ in range(k):
                if ri < len(rd):
                    q.issue(*rd[ri]); ri += 1
        while ri < len(rd):
            q.issue(*rd[ri]); ri += 1
    a('v_lshlrev_b32 v2, 4, v1')
    a('v_bfe_u32 v4, v1, 4, 1')
    a('v_lshlrev_b32 v4, 17, v4')
    a('v_lshl_add_u32 v4, v3, 8, v4')
    a('v_and_b32 v5, 15, v1')
    a('v_lshl_add_u32 v4, v5, 4, v4')
    a('s_lshl_b32 s52, s42, 5')
    a('s_lshl_b32 s53, s43, 2')
    a('s_add_u32 s52, s52, s53')
    a('s_lshl_b32 s53, s51, 1')
    a('s_add_u32 s52, s52, s53')
    a('s_lshl_b32 s53, s41, 2')
    a('s_lshl_b32 s54, s50, 1')
    a('s_add_u32 s53, s53, s54')
    a('s_lshl_b32 s54, s52, 6')
    a('s_add_u32 s54, s54, s53')
    a('s_lshl_b32 s55, s54, 10')
    a('s_lshl_b32 s56, s54, 11')
    a(f's_add_u32 s56, s56, {KV_OFF}')
    a(f's_mov_b32 s58, {f2u(C_SCALE):#x}')
    a(f's_mov_b32 s59, {f2u(C_SCALE):#x}')
    a('s_nop 4')
    T = FR
    for tt in (0,1):
        A_ = acc(tt,0)
        for i in range(8): a(f'v_pk_mul_f32 {v(A_+2*i,2)}, {v(A_+2*i,2)}, s[58:59]')
        for i in range(8): a(f'v_cvt_pk_bf16_f32 v{T+i}, v{A_+2*i}, v{A_+2*i+1}')
        a(f's_add_u32 s60, s55, {tt*1024}')
        a(f's_add_u32 s61, s55, {tt*1024+65536}')
        a(f'buffer_store_dwordx4 {v(T,4)}, v2, s[28:31], s60 offen')
        a(f'buffer_store_dwordx4 {v(T+4,4)}, v2, s[28:31], s61 offen')
        A_ = acc(tt,1)
        for i in range(8): a(f'v_cvt_pk_bf16_f32 v{T+8+i}, v{A_+2*i}, v{A_+2*i+1}')
        a(f's_add_u32 s60, s56, {tt*2048}')
        a(f's_add_u32 s61, s56, {tt*2048+131072}')
        a(f'buffer_store_dwordx4 {v(T+8,4)}, v2, s[28:31], s60 offen')
        a(f'buffer_store_dwordx4 {v(T+12,4)}, v2, s[28:31], s61 offen')
        A_ = acc(tt,2)
        for i in range(8): a(f'v_cvt_pk_bf16_f32 v{T+16+i}, v{A_+2*i}, v{A_+2*i+1}')
        a(f's_add_u32 s60, s56, {tt*2048+1024}')
        a(f'buffer_store_dwordx4 {v(T+16,4)}, v4, s[28:31], s60 offen')
        a(f'buffer_store_dwordx4 {v(T+20,4)}, v4, s[28:31], s60 offen offset:512')
        T += 24
    a('s_endpgm')

    a.label(name + '_loader')
    a('s_sub_u32 s50, s40, 4')
    a('v_lshrrev_b32 v2, 3, v1')
    a('v_and_b32 v3, 7, v1')
    a('v_lshrrev_b32 v4, 1, v2')
    a('v_xor_b32 v5, v3, v4')
    a('s_lshl_b32 s52, s41, 7')
    a('s_lshl_b32 s53, s50, 5')
    a('s_add_u32 s52, s52, s53')
    a('v_add_u32 v6, s52, v2')
    a('v_lshlrev_b32 v6, 10, v6')
    a('v_lshl_add_u32 v8, v5, 4, v6')
    a('v_add_u32 v9, 0x2000, v8')
    a('v_xor_b32 v9, 64, v9')
    a('v_add_u32 v10, 0x4000, v8')
    a('v_add_u32 v11, 0x4000, v9')
    a('v_and_b32 v5, 1, v4')
    a('v_lshlrev_b32 v5, 2, v5')
    a('v_xor_b32 v5, v3, v5')
    a('s_lshl_b32 s53, s50, 4')
    a('v_add_u32 v6, s53, v2')
    a('v_mul_u32_u24 v6, 3072, v6')
    a('v_lshl_add_u32 v6, v5, 4, v6')
    a('s_lshl_b32 s53, s43, 7')
    a('v_add_u32 v12, s53, v6')
    for g in range(3):
        for u in range(2):
            if (g,u) != (0,0):
                a(f'v_add_u32 v{12+2*g+u}, {g*1024+u*8*3072}, v12')
    a('s_lshl_b32 s54, s50, 12')
    a('s_lshl_b32 s55, s50, 11')
    a(f's_add_u32 s55, s55, {WREG}')
    def stage(s_):
        slot = s_ % NSLOT
        a(f's_mov_b32 s56, {s_*128}')
        a(f's_mov_b32 s57, {s_*196608}')
        for qq in range(4):
            a(f's_add_u32 m0, s54, {slot*16384+qq*1024}')
            a('s_nop 0')
            a(f'buffer_load_dwordx4 v{8+qq}, s[20:23], s56 offen lds')
        for g in range(3):
            for u in range(2):
                a(f's_add_u32 m0, s55, {slot*24576+g*8192+u*1024}')
                a('s_nop 0')
                a(f'buffer_load_dwordx4 v{12+2*g+u}, s[24:27], s57 offen lds')
    for s_ in range(4): stage(s_)
    a('s_waitcnt vmcnt(30)')
    a('s_barrier')
    for s_ in range(1, 5):
        a('s_waitcnt vmcnt(20)')
        a('s_barrier')
        stage(s_+3)
    a('s_lshl_b32 s58, s2, 2')
    a('s_add_u32 s58, s58, s50')
    a('s_lshr_b32 s59, s58, 9')
    a('s_cmp_eq_u32 s59, 0')
    a('s_cselect_b32 s60, s8, s14')
    a('s_cselect_b32 s61, s9, s15')
    srd(a, 32, 60, 512*1024)
    a('s_bfe_u32 s59, s58, 0x50004')
    a('s_and_b32 s62, s58, 15')
    a('v_lshrrev_b32 v20, 5, v1')
    a('v_and_b32 v21, 31, v1')
    a('s_lshl_b32 s59, s59, 14')
    a('s_lshl_b32 s62, s62, 6')
    a('s_add_u32 s59, s59, s62')
    a('v_lshlrev_b32 v20, 12, v20')
    a('v_lshl_add_u32 v20, v21, 1, v20')
    a('v_add_u32 v20, s59, v20')
    a('v_add_u32 v21, 0x2000, v20')
    for j in range(8):
        a(f'buffer_load_ushort v{24+j}, v{20+(j>>2)}, s[32:35], 0 offen offset:{(j&3)*1024}')
    E = 8
    srd(a, 36, 16, 1024)
    a('s_lshl_b32 s59, s41, 7')
    a('s_lshl_b32 s62, s46, 3')
    a('s_add_u32 s59, s59, s62')
    a('v_add_u32 v22, s59, v2')
    a('v_lshlrev_b32 v23, 7, v3')
    a('v_lshl_add_u32 v32, v22, 10, v23')
    a('s_cmp_lg_u32 s50, 0')
    a(f's_cbranch_scc1 {name}_nogate')
    for j in range(8):
        a(f'buffer_load_dwordx4 {v(40+4*j,4)}, v32, s[20:23], 0 offen offset:{16*j}')
    for j in range(8):
        a(f'buffer_load_dwordx4 {v(72+4*j,4)}, v23, s[36:39], 0 offen offset:{16*j}')
    for tgt, extra in ((5,20),(6,10),(7,0)):
        a(f's_waitcnt vmcnt({extra+24})')
        a('s_barrier')
    a('s_waitcnt vmcnt(0)')
    for r in range(4): a(f'v_mov_b32 v{33+r}, 0')
    for j in range(32):
        a(f'v_dot2_f32_bf16 v{33+(j&3)}, v{40+j}, v{72+j}, v{33+(j&3)}')
    a('s_nop 2')
    a('v_add_f32 v33, v33, v34')
    a('v_add_f32 v35, v35, v36')
    a('s_nop 0')
    a('v_add_f32 v33, v33, v35')
    a('s_nop 1')
    a('v_add_f32_dpp v33, v33, v33 quad_perm:[1,0,3,2] row_mask:0xf bank_mask:0xf')
    a('s_nop 1')
    a('v_add_f32_dpp v33, v33, v33 quad_perm:[2,3,0,1] row_mask:0xf bank_mask:0xf')
    a('s_nop 1')
    a('v_add_f32_dpp v33, v33, v33 row_half_mirror row_mask:0xf bank_mask:0xf')
    a('v_cvt_pk_bf16_f32 v33, v33, v33')
    a('v_lshlrev_b32 v33, 16, v33')
    a('v_mul_f32 v33, 0xbfb8aa3b, v33')
    a('v_exp_f32 v33, v33')
    a('s_nop 0')
    a('v_add_f32 v33, 1.0, v33')
    a('v_rcp_f32 v33, v33')
    a('s_nop 0')
    a('v_cvt_pk_bf16_f32 v33, v33, v33')
    a('v_lshlrev_b32 v33, 16, v33')
    a('v_lshlrev_b32 v22, 2, v22')
    a(f's_mov_b32 s59, {G_OFF}')
    a('v_cmp_eq_u32 vcc, 0, v3')
    a('s_and_saveexec_b64 s[62:63], vcc')
    a('buffer_store_dword v33, v22, s[28:31], s59 offen')
    a('s_mov_b64 exec, s[62:63]')
    a(f's_branch {name}_wo')
    a.label(name + '_nogate')
    for tgt, extra in ((5,20),(6,10),(7,0)):
        a(f's_waitcnt vmcnt({extra+8})')
        a('s_barrier')
    a('s_waitcnt vmcnt(0)')
    a.label(name + '_wo')
    for r in range(4):
        a(f'v_lshl_or_b32 v{24+r}, v{25+2*r}, 16, v{24+2*r}') if r == 0 else None
    a.lines.pop()
    for r in range(4):
        a(f'v_lshl_or_b32 v{36+r}, v{25+2*r}, 16, v{24+2*r}')
    a('s_lshl_b32 s58, s58, 10')
    a(f's_add_u32 s58, s58, {WOF_OFF}')
    a('v_lshlrev_b32 v2, 4, v1')
    a('buffer_store_dwordx4 v[36:39], v2, s[28:31], s58 offen')
    a.label(end)
    a('s_endpgm')
    return a.text(), dict(name=name, vgpr=176, sgpr=72, lds=K1_LDS, block=512, grid=256)
```

```python
from asmlib import *
from layout import *
from k1 import srd

ONES_OFF = 131072
SCR_OFF  = 131072 + 8192
K2_LDS   = SCR_OFF + 18432

QB=164; QA=8; QAb=12
S=[16,32]; P=[48,56]; O=[64,80]
K=[96,100]; V=[104,112]
CF=120; CL=136
vKa=152; vVa=153; vVs=154; vG=155; vGA=156; vL16=157; vT=158

NEG = 0xf149f2ca

def exp_unit(a, s, p, mf, slots, pos=(0,6,11), pre=None):
    ci = 0; mi = 0
    for i in range(16):
        while mi < 3 and i == pos[mi]:
            if mf[mi] is not None: a(mf[mi])
            for x in slots[mi]: a(x)
            mi += 1
        a(f'v_exp_f32 v{s+i}, v{s+i}')
        if i % 2 == 1 and i >= 3:
            a(f'v_cvt_pk_bf16_f32 v{p+ci}, v{s+2*ci}, v{s+2*ci+1}'); ci += 1
    a('s_nop 0')
    while ci < 8:
        a(f'v_cvt_pk_bf16_f32 v{p+ci}, v{s+2*ci}, v{s+2*ci+1}'); ci += 1

def mm(d, A, B, C):
    c = C if isinstance(C, str) else v(C, 16)
    return f'v_mfma_f32_32x32x16_bf16 {v(d,16)}, {v(A,4)}, {v(B,4)}, {c}'

def gen_k2(name='attn_kernel'):
    a = Asm()
    a(f'.globl {name}')
    a('.p2align 8')
    a(f'.type {name},@function')
    a.label(name)
    end = name + '_end'
    a('s_cmp_ge_u32 s2, 256')
    a(f's_cbranch_scc1 {end}')
    a('s_load_dwordx2 s[18:19], s[0:1], 72')
    a('v_lshrrev_b32 v2, 6, v0')
    a('v_and_b32 v1, 63, v0')
    a('v_readfirstlane_b32 s40, v2')
    a('s_and_b32 s41, s2, 7')
    a('s_lshl_b32 s41, s41, 2')
    a('s_bfe_u32 s42, s2, 0x20003')
    a('s_add_u32 s41, s41, s42')
    a('s_lshr_b32 s42, s2, 5')
    a('s_lshl_b32 s43, s42, 3')
    a('s_add_u32 s43, s43, s40')
    a(f'v_lshlrev_b32 v{vL16}, 4, v1')
    a('s_waitcnt lgkmcnt(0)')
    srd(a, 28, 18, WS_USED)
    a('s_add_u32 s44, s41, 32')
    a('s_lshl_b32 s44, s44, 6')
    a('s_add_u32 s45, s44, s43')
    a('s_lshl_b32 s45, s45, 10')
    a(f'buffer_load_dwordx4 {v(QB,4)}, v{vL16}, s[28:31], s45 offen')
    a('v_and_b32 v2, 31, v1')
    a('s_lshl_b32 s45, s43, 5')
    a('v_add_u32 v3, s45, v2')
    a('v_lshlrev_b32 v3, 2, v3')
    a(f's_mov_b32 s46, {G_OFF}')
    a(f'buffer_load_dword v{vG}, v3, s[28:31], s46 offen')
    a('s_lshl_b32 s45, s42, 3')
    a('s_lshl_b32 s46, s40, 1')
    a('s_add_u32 s45, s45, s46')
    a('s_sub_u32 s45, s45, 8')
    a('s_max_i32 s45, s45, 0')
    a('s_add_u32 s45, s45, s44')
    a('s_lshl_b32 s45, s45, 11')
    a(f's_add_u32 s45, s45, {KV_OFF}')
    a('s_lshl_b32 s47, s40, 12')
    a(f's_add_u32 s47, s47, {48*2048}')
    for i in range(4):
        a(f's_add_u32 m0, s47, {i*1024}')
        a(f's_add_u32 s46, s45, {i*1024}')
        a(f'buffer_load_dwordx4 v{vL16}, s[28:31], s46 offen lds')
    a('s_and_b32 s48, s40, 3')
    a('s_lshr_b32 s49, s40, 2')
    a('s_lshl_b32 s50, s41, 6')
    a('s_lshl_b32 s45, s42, 3')
    a('s_lshl_b32 s46, s48, 1')
    a('s_add_u32 s51, s45, s46')
    a('s_add_u32 s45, s50, s51')
    a('s_lshl_b32 s45, s45, 10')
    a(f'buffer_load_dwordx4 {v(QA,4)}, v{vL16}, s[28:31], s45 offen')
    a(f'buffer_load_dwordx4 {v(QAb,4)}, v{vL16}, s[28:31], s45 offen offset:1024')
    a('s_add_u32 s52, s51, s49')
    a('s_lshl_b32 s45, s52, 5')
    a('v_add_u32 v3, s45, v2')
    a('v_lshlrev_b32 v3, 2, v3')
    a(f's_mov_b32 s46, {G_OFF}')
    a(f'buffer_load_dword v{vGA}, v3, s[28:31], s46 offen')
    a('s_lshl_b32 s53, s50, 11')
    a(f's_add_u32 s53, s53, {KV_OFF}')
    a('s_lshl_b32 s54, s40, 10')
    a('s_add_u32 s55, s53, s54')
    for i in range(12):
        a(f's_add_u32 m0, s54, {i*8192}')
        a(f's_add_u32 s46, s55, {i*8192}')
        a(f'buffer_load_dwordx4 v{vL16}, s[28:31], s46 offen lds')
    for r in range(4): a(f'v_mov_b32 v{vT+2+r}, 0x3f803f80')
    a('v_lshlrev_b32 v3, 4, v0')
    a(f'v_add_u32 v3, {ONES_OFF}, v3')
    a(f'ds_write_b128 v3, {v(vT+2,4)}')
    a('v_lshrrev_b32 v3, 5, v1')
    a(f'v_lshlrev_b32 v{vT}, 2, v3')
    a(f'v_sub_u32 v{vT}, v2, v{vT}')
    a(f'v_mov_b32 v{vT+1}, {NEG:#x}')
    for r in range(16):
        b = (r & 3) + 8*(r >> 2)
        a(f'v_cmp_gt_i32 vcc, {b}, v{vT}')
        a('s_nop 1')
        a(f'v_cndmask_b32_e64 v{CF+r}, v{vT+1}, 0, vcc')
        a(f'v_cndmask_b32_e64 v{CL+r}, 0, v{vT+1}, vcc')
    a('v_and_b32 v4, 15, v1')
    a('v_lshlrev_b32 v4, 4, v4')
    a('v_lshl_add_u32 v5, v3, 8, v4')
    a('v_add_u32 v5, 1024, v5')
    a('v_bfe_u32 v6, v1, 4, 1')
    a('v_cmp_eq_u32 vcc, 1, v6')
    a(f'v_add_u32 v4, {ONES_OFF}, v4')
    a('s_add_u32 s45, s40, 56')
    a('s_lshl_b32 s45, s45, 11')
    a('v_add_u32 v6, s45, v5')
    a(f'v_cndmask_b32 v{vVa}, v6, v4, vcc')
    a(f'v_mov_b32 v6, 2048')
    a(f'v_cndmask_b32_e64 v{vVs}, v6, 0, vcc')
    a('s_add_u32 s45, s40, 48')
    a('s_lshl_b32 s45, s45, 11')
    a(f'v_add_u32 v{vKa}, s45, v{vL16}')
    for r in range(16): a(f'v_mov_b32 v{O[0]+r}, 0')
    for r in range(8): a(f'v_mov_b32 v{P[1]+r}, 0')
    for r in range(8): a(f'v_mov_b32 v{V[1]+r}, 0')
    a('s_min_u32 s56, s43, 8')
    a('s_add_u32 s56, s56, 1')
    a('s_waitcnt vmcnt(15) lgkmcnt(0)')
    a('s_barrier')
    def kB(i): return f'ds_read_b128 {v(K[i&1],4)}, v{vKa} offset:{(8-i)*2048}'
    def vB(i, u): return f'ds_read_b128 {v(V[i&1]+4*u,4)}, v{vVa} offset:{u*512}'
    a(kB(0)); a(kB(1))
    a('s_waitcnt lgkmcnt(1)')
    a(mm(S[0], K[0], QB, CL))
    a('s_nop 7')
    a('s_nop 1')
    tails = [name+'_btail0', name+'_btail1']
    for i in range(8):
        a(f's_cmp_le_u32 s56, {i+1}')
        a(f's_cbranch_scc1 {tails[i&1]}')
        a('s_waitcnt lgkmcnt(0)')
        up = (i-1) & 1
        mf = [mm(S[(i+1)&1], K[(i+1)&1], QB, CF if i+1 == 8 else '0'),
              mm(O[0], V[up], P[up], O[0]), mm(O[0], V[up]+4, P[up]+4, O[0])]
        sl = [[vB(i,0), vB(i,1)] + ([kB(i+2)] if i+2 <= 8 else []), [], []]
        exp_unit(a, S[i&1], P[i&1], mf, sl)
        a(f'v_sub_u32 v{vVa}, v{vVa}, v{vVs}')
    a(f's_branch {tails[0]}')
    for par in (0,1):
        a.label(tails[par])
        up = par ^ 1
        a('s_waitcnt lgkmcnt(0)')
        a(vB(par,0)); a(vB(par,1))
        a('s_nop 7')
        mf = [None, mm(O[0], V[up], P[up], O[0]), mm(O[0], V[up]+4, P[up]+4, O[0])]
        exp_unit(a, S[par], P[par], mf, [[],[],[]])
        a('s_waitcnt lgkmcnt(0)')
        a(mm(O[0], V[par], P[par], O[0]))
        a(mm(O[0], V[par]+4, P[par]+4, O[0]))
        if par == 0: a(f's_branch {name}_bdone')
    a.label(name+'_bdone')
    a(f'v_sub_f32 v{vT}, 1.0, v{vG}')
    a(f'v_cvt_pk_bf16_f32 v{vT}, v{vT}, v{vT}')
    a(f'v_lshlrev_b32 v{vT}, 16, v{vT}')
    a('s_nop 7')
    a('s_nop 1')
    a(f'v_rcp_f32 v{vT+1}, v{O[0]+8}')
    a('s_nop 0')
    a(f'v_mul_f32 v{vT}, v{vT}, v{vT+1}')
    for r in range(8): a(f'v_mul_f32 v{O[0]+r}, v{O[0]+r}, v{vT}')
    for r in range(4): a(f'v_cvt_pk_bf16_f32 v{vT+2+r}, v{O[0]+2*r}, v{O[0]+2*r+1}')
    a('s_add_u32 s45, s43, 64')
    a('s_lshl_b32 s45, s45, 5')
    a('s_add_u32 s45, s45, s41')
    a('s_lshl_b32 s45, s45, 10')
    a(f's_add_u32 s45, s45, {OF_OFF}')
    a(f'buffer_store_dwordx4 {v(vT+2,4)}, v{vL16}, s[28:31], s45 offen')
    a('s_barrier')
    for i in range(4):
        a(f's_add_u32 m0, s54, {98304+i*8192}')
        a(f's_add_u32 s46, s55, {98304+i*8192}')
        a(f'buffer_load_dwordx4 v{vL16}, s[28:31], s46 offen lds')
    a('s_lshl_b32 s45, s49, 16')
    a(f'v_add_u32 v{vKa}, s45, v{vL16}')
    a('v_add_u32 v6, s45, v5')
    a('v_bfe_u32 v7, v1, 4, 1')
    a('v_cmp_eq_u32 vcc, 1, v7')
    a('v_mov_b32 v7, 4096')
    a('s_nop 0')
    a(f'v_cndmask_b32 v{vVa}, v6, v4, vcc')
    a(f'v_cndmask_b32_e64 v{vVs}, v7, 0, vcc')
    for x in (0,1):
        for r in range(16): a(f'v_mov_b32 v{O[x]+r}, 0')
    for r in range(8): a(f'v_mov_b32 v{P[1]+r}, 0')
    for r in range(8): a(f'v_mov_b32 v{V[1]+r}, 0')
    a('s_waitcnt vmcnt(4)')
    a('s_barrier')
    Q = [QA, QAb]
    def kA(t): return f'ds_read_b128 {v(K[t&1],4)}, v{vKa} offset:{t*2048}'
    def vA(t,u): return f'ds_read_b128 {v(V[t&1]+4*u,4)}, v{vVa} offset:{t*2048+u*512}'
    a(kA(0)); a(vA(0,0)); a(vA(0,1))
    a('s_waitcnt lgkmcnt(2)')
    a(mm(S[0], K[0], Q[0], '0'))
    a('s_nop 7')
    a('s_mov_b32 s57, 1')
    a('s_mov_b32 s58, 0')
    loop = name + '_aloop'
    a('.p2align 6')
    a.label(loop)
    for t in (0,1):
        tp = (t-1) & 1
        mf = [mm(S[1], K[t&1], Q[1], '0'), mm(O[1], V[tp], P[1], O[1]), mm(O[1], V[tp]+4, P[1]+4, O[1])]
        sl = [[kA(t+1)], ['s_sub_u32 s57, s57, 1'] if t == 1 else [], ['s_waitcnt lgkmcnt(0)']]
        exp_unit(a, S[0], P[0], mf, sl)
        mf = [mm(S[0], K[(t+1)&1], Q[0], '0'), mm(O[0], V[t&1], P[0], O[0]), mm(O[0], V[t&1]+4, P[0]+4, O[0])]
        sl = [[vA(t+1,0)], [vA(t+1,1)], []]
        exp_unit(a, S[1], P[1], mf, sl)
    a(f'v_add_u32 v{vKa}, 4096, v{vKa}')
    a(f'v_add_u32 v{vVa}, v{vVs}, v{vVa}')
    a(f's_cbranch_scc0 {loop}')
    a('s_cmp_lg_u32 s58, 0')
    a(f's_cbranch_scc1 {name}_adone')
    a('s_waitcnt vmcnt(0)')
    a('s_barrier')
    a('s_mov_b32 s57, 13')
    a('s_mov_b32 s58, 1')
    a(f's_branch {loop}')
    a.label(name + '_adone')
    a(mm(O[1], V[1], P[1], O[1]))
    a(mm(O[1], V[1]+4, P[1]+4, O[1]))
    a('s_mul_i32 s45, s40, 2304')
    a(f's_add_u32 s45, s45, {SCR_OFF}')
    a(f'v_add_u32 v2, s45, v{vL16}')
    a('v_lshlrev_b32 v3, 2, v1')
    a('v_add_u32 v3, s45, v3')
    a('s_xor_b32 s46, s40, 4')
    a('s_mul_i32 s46, s46, 2304')
    a(f's_add_u32 s46, s46, {SCR_OFF}')
    a(f'v_add_u32 v6, s46, v{vL16}')
    a('v_lshlrev_b32 v7, 2, v1')
    a('v_add_u32 v7, s46, v7')
    a('s_cmp_eq_u32 s49, 0')
    a(f's_cbranch_scc1 {name}_cmb0')
    a(f'ds_write_b128 v2, {v(O[0],4)}')
    a(f'ds_write_b128 v2, {v(O[0]+4,4)} offset:1024')
    a(f'ds_write_b32 v3, v{O[0]+8} offset:2048')
    a('s_nop 7')
    for r in range(9): a(f'v_mov_b32 v{O[0]+r}, v{O[1]+r}')
    a(f's_branch {name}_cmb1')
    a.label(name + '_cmb0')
    a('s_nop 7')
    a('s_nop 3')
    a(f'ds_write_b128 v2, {v(O[1],4)}')
    a(f'ds_write_b128 v2, {v(O[1]+4,4)} offset:1024')
    a(f'ds_write_b32 v3, v{O[1]+8} offset:2048')
    a.label(name + '_cmb1')
    a('s_waitcnt lgkmcnt(0)')
    a('s_barrier')
    a(f'ds_read_b128 {v(S[0],4)}, v6')
    a(f'ds_read_b128 {v(S[0]+4,4)}, v6 offset:1024')
    a(f'ds_read_b32 v{S[0]+8}, v7 offset:2048')
    a('s_waitcnt lgkmcnt(0)')
    for r in range(9): a(f'v_add_f32 v{O[0]+r}, v{O[0]+r}, v{S[0]+r}')
    a(f'v_rcp_f32 v{vT+1}, v{O[0]+8}')
    a('s_nop 0')
    a(f'v_mul_f32 v{vT}, v{vGA}, v{vT+1}')
    for r in range(8): a(f'v_mul_f32 v{O[0]+r}, v{O[0]+r}, v{vT}')
    for r in range(4): a(f'v_cvt_pk_bf16_f32 v{vT+2+r}, v{O[0]+2*r}, v{O[0]+2*r+1}')
    a('s_lshl_b32 s45, s52, 5')
    a('s_add_u32 s45, s45, s41')
    a('s_lshl_b32 s45, s45, 10')
    a(f's_add_u32 s45, s45, {OF_OFF}')
    a(f'buffer_store_dwordx4 {v(vT+2,4)}, v{vL16}, s[28:31], s45 offen')
    a.label(end)
    a('s_endpgm')
    return a.text(), dict(name=name, vgpr=168, sgpr=72, lds=K2_LDS, block=512, grid=256)
```

```python
from asmlib import *
from layout import *
from k1 import srd

def gen_k3(name='oproj_kernel'):
    a = Asm()
    a(f'.globl {name}')
    a('.p2align 8')
    a(f'.type {name},@function')
    a.label(name)
    end = name + '_end'
    a('s_cmp_ge_u32 s2, 256')
    a(f's_cbranch_scc1 {end}')
    a('s_load_dwordx2 s[16:17], s[0:1], 56')
    a('s_load_dwordx2 s[18:19], s[0:1], 72')
    a('v_lshrrev_b32 v2, 6, v0')
    a('v_and_b32 v1, 63, v0')
    a('v_readfirstlane_b32 s40, v2')
    a('s_and_b32 s41, s2, 7')
    a('s_lshl_b32 s41, s41, 2')
    a('s_bfe_u32 s42, s2, 0x20003')
    a('s_add_u32 s41, s41, s42')
    a('s_lshr_b32 s42, s2, 5')
    a('s_and_b32 s43, s40, 1')
    a('s_bfe_u32 s44, s40, 0x10001')
    a('s_lshr_b32 s45, s40, 2')
    a('v_lshlrev_b32 v2, 4, v1')
    a('s_waitcnt lgkmcnt(0)')
    srd(a, 28, 18, WS_USED)
    srd(a, 24, 16, 2048*1024)
    a('s_lshl_b32 s46, s45, 6')
    a('s_lshl_b32 s47, s41, 1')
    a('s_add_u32 s46, s46, s47')
    a('s_add_u32 s46, s46, s43')
    a('s_lshl_b32 s46, s46, 15')
    a(f's_add_u32 s46, s46, {OF_OFF}')
    a('s_lshl_b32 s47, s45, 9')
    a('s_lshl_b32 s48, s42, 1')
    a('s_add_u32 s47, s47, s48')
    a('s_add_u32 s47, s47, s44')
    a('s_lshl_b32 s47, s47, 10')
    a(f's_add_u32 s47, s47, {WOF_OFF}')
    BUF = [16, 80]; ACC = 144
    def chunk(c):
        b = BUF[c & 1]
        for i in range(8):
            h = 8*c + i
            a(f's_add_u32 s50, s46, {h*1024}')
            a(f'buffer_load_dwordx4 {v(b+8*i,4)}, v2, s[28:31], s50 offen')
            a(f's_add_u32 s51, s47, {h*16384}')
            a(f'buffer_load_dwordx4 {v(b+8*i+4,4)}, v2, s[28:31], s51 offen')
    chunk(0); chunk(1)
    for c in range(4):
        a(f's_waitcnt vmcnt({16 if c < 3 else 0})')
        b = BUF[c & 1]
        for i in range(8):
            cc = '0' if (c == 0 and i == 0) else v(ACC,16)
            a(f'v_mfma_f32_32x32x16_bf16 {v(ACC,16)}, {v(b+8*i+4,4)}, {v(b+8*i,4)}, {cc}')
        if c + 2 < 4: chunk(c+2)
    a('s_and_b32 s50, s40, 3')
    a('s_lshl_b32 s50, s50, 12')
    a('v_add_u32 v3, s50, v2')
    a('s_nop 7')
    a('s_nop 3')
    a('s_cmp_eq_u32 s45, 0')
    a(f's_cbranch_scc1 {name}_a')
    for i in range(4): a(f'ds_write_b128 v3, {v(ACC+4*i,4)} offset:{i*1024}')
    a('s_waitcnt lgkmcnt(0)')
    a('s_barrier')
    a('s_endpgm')
    a.label(name + '_a')
    a('s_barrier')
    for i in range(4): a(f'ds_read_b128 {v(16+4*i,4)}, v3 offset:{i*1024}')
    a('s_waitcnt lgkmcnt(0)')
    for r in range(16): a(f'v_add_f32 v{ACC+r}, v{ACC+r}, v{16+r}')
    for r in range(8): a(f'v_cvt_pk_bf16_f32 v{32+r}, v{ACC+2*r}, v{ACC+2*r+1}')
    a('s_nop 1')
    a('v_permlane32_swap_b32 v32, v34')
    a('v_permlane32_swap_b32 v33, v35')
    a('v_permlane32_swap_b32 v36, v38')
    a('v_permlane32_swap_b32 v37, v39')
    a('v_and_b32 v4, 31, v1')
    a('s_lshl_b32 s50, s41, 6')
    a('s_lshl_b32 s51, s43, 5')
    a('s_add_u32 s50, s50, s51')
    a('v_add_u32 v4, s50, v4')
    a('v_lshlrev_b32 v4, 10, v4')
    a('v_lshrrev_b32 v5, 5, v1')
    a('v_lshl_add_u32 v4, v5, 4, v4')
    a('s_lshl_b32 s50, s42, 7')
    a('s_lshl_b32 s51, s44, 6')
    a('s_add_u32 s50, s50, s51')
    a('buffer_store_dwordx4 v[32:35], v4, s[24:27], s50 offen')
    a('buffer_store_dwordx4 v[36:39], v4, s[24:27], s50 offen offset:32')
    a.label(end)
    a('s_endpgm')
    return a.text(), dict(name=name, vgpr=160, sgpr=72, lds=16384, block=512, grid=256)
```

```python
QF_OFF  = 0
KV_OFF  = 4 << 20
WOF_OFF = 12 << 20
OF_OFF  = 13 << 20
G_OFF   = 17 << 20
FLAG_OFF= (17 << 20) + 65536
WS_USED = 18 << 20
C_SCALE = 0.25 * 1.4426950408889634
import struct
def f2u(x): return struct.unpack('<I', struct.pack('<f', x))[0]
```

```python
import sys
from asmlib import check_hazards
def build(kernels, out):
    hdr = '; generated by gen/build.py (hand-written generator)\n'
    for t, m in kernels:
        hdr += f"; @launch kernel={m['name']} grid=({m['grid']},1,1) block=({m['block']},1,1) lds={m['lds']}\n"
    txt = hdr + '.amdgcn_target "amdgcn-amd-amdhsa--gfx950"\n.text\n'
    for t, m in kernels:
        p = check_hazards(t)
        if p:
            print('HAZARDS in', m['name']); print('\n'.join(p))
        txt += t
    txt += '.section .rodata,"a"\n'
    for t, m in kernels:
        vg = m['vgpr']
        acc = m.get('accum', (vg + 3)//4*4)
        txt += f""".p2align 6
.amdhsa_kernel {m['name']}
  .amdhsa_next_free_vgpr {vg}
  .amdhsa_next_free_sgpr {m['sgpr']}
  .amdhsa_accum_offset {acc}
  .amdhsa_group_segment_fixed_size 0
  .amdhsa_kernarg_size 80
  .amdhsa_user_sgpr_count 2
  .amdhsa_user_sgpr_kernarg_segment_ptr 1
  .amdhsa_system_sgpr_workgroup_id_x 1
  .amdhsa_float_denorm_mode_32 3
.end_amdhsa_kernel
"""
    open(out, 'w').write(txt)
if __name__ == '__main__':
    from k1 import gen_k1
    from k2 import gen_k2
    from k3 import gen_k3
    out = sys.argv[1] if len(sys.argv) > 1 else 'gated_mix__softmax_full_mha__sliding_block__prompt.s'
    st = len(sys.argv) > 2 and sys.argv[2] == 'stamp'
    build([gen_k1(stamp=st), gen_k2(stamp=st), gen_k3(stamp=st)], out)
```

```python
import re

class Asm:
    def __init__(self):
        self.lines = []
        self.uid = 0
    def __call__(self, s=''):
        for l in s.split('\n'):
            l = l.strip()
            if l:
                self.lines.append(('    ' + l) if not l.endswith(':') and not l.startswith('.') else l)
    def raw(self, s):
        self.lines.append(s)
    def label(self, name):
        self.lines.append(name + ':')
    def newlabel(self, base):
        self.uid += 1
        return f'{base}_{self.uid}'
    def c(self, s):
        self.lines.append('    ; ' + s)
    def text(self):
        return '\n'.join(self.lines) + '\n'

def v(a, n=1):
    return f'v{a}' if n == 1 else f'v[{a}:{a+n-1}]'
def s(a, n=1):
    return f's{a}' if n == 1 else f's[{a}:{a+n-1}]'

class DSQ:
    def __init__(self, asm):
        self.a = asm
        self.q = []
    def issue(self, line, tag):
        self.a(line)
        self.q.append(tag)
    def wait(self, tags):
        if not isinstance(tags, (list, tuple, set)):
            tags = [tags]
        idx = -1
        for i, t in enumerate(self.q):
            if t in tags:
                idx = i
        if idx < 0:
            return
        n = len(self.q) - 1 - idx
        assert n <= 15, n
        self.a(f's_waitcnt lgkmcnt({n})')
        self.q = self.q[idx+1:]
    def waitall(self):
        if self.q:
            self.a('s_waitcnt lgkmcnt(0)')
        self.q = []

def _regs(tok):
    tok = tok.strip()
    neg = tok.lstrip('-')
    if neg.startswith('abs(') or neg.startswith('|'):
        neg = neg.replace('abs(', '').replace(')', '').replace('|', '')
    m = re.fullmatch(r'([vsa])(\d+)', neg)
    if m:
        return [(m.group(1), int(m.group(2)))]
    m = re.fullmatch(r'([vsa])\[(\d+):(\d+)\]', neg)
    if m:
        return [(m.group(1), i) for i in range(int(m.group(2)), int(m.group(3)) + 1)]
    if neg == 'vcc':
        return [('s', 'vcc')]
    if neg in ('vcc_lo', 'vcc_hi'):
        return [('s', 'vcc')]
    if neg == 'exec':
        return [('s', 'exec')]
    if neg == 'm0':
        return [('s', 'm0')]
    return []

TRANS = ('v_exp_f32', 'v_log_f32', 'v_rcp_f32', 'v_rsq_f32', 'v_sqrt_f32', 'v_sin_f32', 'v_cos_f32', 'v_exp_f16', 'v_rcp_f16')

class Ins:
    def __init__(self, text, lineno):
        self.text = text
        self.lineno = lineno
        t = text.split(';')[0].strip()
        parts = t.split(None, 1)
        self.op = parts[0]
        ops = []
        if len(parts) > 1:
            rest = parts[1]
            cur = ''; depth = 0
            for ch in rest:
                if ch == '[': depth += 1
                if ch == ']': depth -= 1
                if ch == ',' and depth == 0:
                    ops.append(cur.strip()); cur = ''
                else:
                    cur += ch
            if cur.strip(): ops.append(cur.strip())
            if ops:
                last = ops[-1].split()
                ops[-1] = last[0]
                self.mods = last[1:]
            else:
                self.mods = []
        else:
            self.mods = []
        self.ops = ops
        op = self.op
        self.is_mfma = op.startswith('v_mfma')
        self.is_valu = op.startswith('v_') and not self.is_mfma
        self.is_salu = op.startswith('s_')
        self.is_vmem = op.startswith(('buffer_', 'global_', 'flat_'))
        self.is_ds = op.startswith('ds_')
        self.is_trans = any(op.startswith(x) for x in TRANS)
        self.w = []
        self.r = []
        R = [_regs(o) for o in ops]
        if self.is_mfma:
            self.w = R[0]; self.A = R[1]; self.B = R[2]; self.C = R[3] if len(R) > 3 else []
            self.r = self.A + self.B + self.C
        elif self.is_valu:
            if op.startswith('v_cmp'):
                self.w = R[0]; self.r = sum(R[1:], [])
                if op.startswith('v_cmpx'): self.w = self.w + [('s', 'exec')]
            elif op.startswith(('v_readfirstlane', 'v_readlane')):
                self.w = R[0]; self.r = sum(R[1:], [])
            elif op.startswith(('v_add_co', 'v_sub_co', 'v_addc_co', 'v_subb_co', 'v_subrev_co')):
                self.w = R[0] + R[1]; self.r = sum(R[2:], [])
            elif op.startswith(('v_permlane32_swap', 'v_permlane16_swap')):
                self.w = R[0] + R[1]; self.r = R[0] + R[1]
            elif op.startswith(('v_fmac', 'v_dot2c', 'v_mac')):
                self.w = R[0]; self.r = sum(R, [])
            elif op.startswith('v_nop'):
                pass
            else:
                self.w = R[0]; self.r = sum(R[1:], [])
                if op.startswith('v_cndmask') and len(ops) == 3:
                    self.r.append(('s', 'vcc'))
                if 'dst_unused:UNUSED_PRESERVE' in text: self.r += R[0]
        elif self.is_ds:
            if op.startswith(('ds_read', 'ds_bpermute', 'ds_permute', 'ds_swizzle')):
                self.w = R[0]; self.r = sum(R[1:], [])
            else:
                self.r = sum(R, [])
        elif self.is_vmem:
            if 'lds' in self.mods or op.startswith('global_load_lds'):
                self.r = sum(R, []) + [('s', 'm0')]
            elif '_load' in op:
                self.w = R[0]; self.r = sum(R[1:], [])
            elif 'atomic' in op:
                self.r = sum(R, [])
                if 'sc0' in self.mods: self.w = R[0]
            elif 'store' in op:
                self.r = sum(R, [])
                self.data = R[0] if op.startswith('buffer_') else R[1]
        elif self.is_salu:
            if op.startswith(('s_cmp', 's_cbranch', 's_branch', 's_waitcnt', 's_nop', 's_barrier', 's_endpgm', 's_setprio', 's_sleep', 's_bitcmp')):
                self.r = sum(R, [])
            else:
                self.w = R[0] if R else []
                self.r = sum(R[1:], [])
                if 'saveexec' in op: self.w = self.w + [('s', 'exec')]
    def states(self):
        if self.op == 's_nop':
            return int(self.ops[0], 0) + 1
        return 1

def check_hazards(text):
    ins = []; labels = {}
    for n, line in enumerate(text.split('\n'), 1):
        t = line.split(';')[0].strip()
        if not t: continue
        if t.endswith(':'):
            labels[t[:-1]] = len(ins); continue
        if t.startswith('.'):
            continue
        if not re.match(r'^(v_|s_|ds_|buffer_|global_|flat_)', t): continue
        ins.append(Ins(t, n))
    N = len(ins)
    succ = []
    for i, x in enumerate(ins):
        if x.op == 's_endpgm': succ.append([])
        elif x.op == 's_branch': succ.append([labels[x.ops[0]]] if x.ops[0] in labels else [])
        elif x.op.startswith('s_cbranch'):
            sc = [i + 1] if i + 1 < N else []
            if x.ops[0] in labels: sc.append(labels[x.ops[0]])
            succ.append(sc)
        else: succ.append([i + 1] if i + 1 < N else [])
    probs = []
    def ov(a, b):
        return set(a) & set(b)
    def walk(i, maxd, fn):
        stack = [(j, 0) for j in succ[i]]
        seen = set()
        while stack:
            j, d = stack.pop()
            if d >= maxd or (j, d) in seen or j >= N: continue
            seen.add((j, d))
            stop = fn(ins[j], d)
            if stop: continue
            for k in succ[j]:
                stack.append((k, d + ins[j].states()))
    def rep(p, c, d, need, what):
        probs.append(f'{what}: line {p.lineno} "{p.text}" -> line {c.lineno} "{c.text}" has {d} states, needs {need}')
    for i, p in enumerate(ins):
        if p.is_valu:
            wv = [r for r in p.w if r[0] in 'va']
            ws = [r for r in p.w if r[0] == 's']
            if wv:
                def f(c, d, p=p, wv=wv):
                    if c.is_mfma and ov(wv, c.r) and d < 2: rep(p, c, d, 2, 'VALU->MFMA')
                    if c.op.startswith(('v_permlane32_swap', 'v_permlane16_swap')) and ov(wv, c.r) and d < 2: rep(p, c, d, 2, 'VALU->permlane')
                    if c.is_valu and ('dpp' in c.op or 'row_' in c.text or 'quad_perm' in c.text) and c.ops and ov(wv, _regs(c.ops[1])) and d < 2: rep(p, c, d, 2, 'VALU->DPP')
                    if c.op.startswith(('v_readfirstlane', 'v_readlane')) and ov(wv, c.r) and d < 1: rep(p, c, d, 1, 'VALU->readlane')
                    if p.is_trans and c.is_valu and not c.is_trans and ov(wv, c.r) and d < 1: rep(p, c, d, 1, 'trans->VALU')
                    if p.is_trans and c.is_mfma and ov(wv, c.r) and d < 2: rep(p, c, d, 2, 'trans->MFMA')
                    return False
                walk(i, 2, f)
            if ws:
                def f(c, d, p=p, ws=ws):
                    if c.is_vmem and ov(ws, c.r) and d < 5: rep(p, c, d, 5, 'VALU sgpr->VMEM')
                    if c.is_valu and not c.op.startswith(('v_readlane','v_writelane')) and (ov(ws, c.r)) and d < 2: rep(p, c, d, 2, 'VALU sgpr->VALU')
                    if c.op.startswith(('v_readlane', 'v_writelane')) and ov(ws, c.r) and d < 4: rep(p, c, d, 4, 'VALU sgpr->lane sel')
                    if ('s', 'exec') in ws and (c.is_mfma) and d < 4: rep(p, c, d, 4, 'VALU exec->MFMA')
                    return False
                walk(i, 5, f)
        if p.is_mfma:
            passes = 8 if '32x32' in p.op else 4
            need = 12 if passes == 8 else 8
            needc = 10 if passes == 8 else 6
            war = 7 if passes == 8 else 3
            def f(c, d, p=p):
                if c.is_mfma:
                    if ov(p.w, c.A + c.B) and d < need: rep(p, c, d, need, 'MFMA D->MFMA A/B')
                    if ov(p.w, c.C) and (c.C != p.w or c.op != p.op) and d < needc: rep(p, c, d, needc, 'MFMA D->MFMA C partial')
                    if ov(p.w, c.w) and not (c.C == p.w and c.w == p.w) and d < need: rep(p, c, d, need, 'MFMA D->MFMA D WAW (check)')
                elif c.is_valu or c.is_ds or c.is_vmem:
                    if ov(p.w, c.r + c.w) and d < need: rep(p, c, d, need, 'MFMA D->VALU/mem')
                    if c.is_valu and ov(p.C, c.w) and d < war: rep(p, c, d, war, 'MFMA C WAR')
                return False
            walk(i, need, f)
        if p.is_vmem and 'store' in p.op and ('x4' in p.op or 'x3' in p.op):
            def f(c, d, p=p):
                if (c.is_valu or c.is_mfma) and ov(p.data, c.w) and d < 2: rep(p, c, d, 2, 'store data WAR')
                if (c.is_ds or c.is_vmem) and ov(p.data, c.w) and d < 1: rep(p, c, d, 1, 'store data WAR(ld)')
                return False
            walk(i, 2, f)
        if p.is_salu and ('s', 'm0') in p.w:
            def f(c, d, p=p):
                if c.is_vmem and ('s', 'm0') in c.r and d < 1: rep(p, c, d, 1, 'M0->LDSDMA')
                return False
            walk(i, 1, f)
    return probs


class Stamps:
    def __init__(self, a, on, kidx):
        self.a=a; self.on=on; self.n=0; self.kidx=kidx
    def start(self):
        if not self.on: return
        a=self.a
        a('s_memrealtime s[74:75]')
        a('s_memtime s[72:73]')
        a('s_waitcnt lgkmcnt(0)')
        a('s_mov_b32 s76, s72')
        self.n=1
    def mark(self, idx=None):
        if not self.on: return
        a=self.a
        i = self.n if idx is None else idx
        a('s_memtime s[72:73]')
        a('s_waitcnt lgkmcnt(0)')
        a(f's_mov_b32 s{76+i}, s72')
        self.n = i+1
    def flush(self, wave_sgpr, ws_srd, base):
        if not self.on: return
        a=self.a
        a('s_memrealtime s[72:73]')
        a('s_waitcnt lgkmcnt(0)')
        a('s_mov_b32 s75, s72')
        a(f's_add_u32 s72, s2, {self.kidx*256}')
        a('s_lshl_b32 s72, s72, 3')
        a(f's_add_u32 s72, s72, s{wave_sgpr}')
        a('s_lshl_b32 s72, s72, 6')
        a(f's_add_u32 s72, s72, {base}')
        a('v_mov_b32 v250, 0')
        for i in range(16):
            a(f'v_writelane_b32 v250, s{74+i}, {i}')
        a('v_and_b32 v251, 63, v0')
        a('v_lshlrev_b32 v251, 2, v251')
        a('s_mov_b64 s[92:93], exec')
        a('s_mov_b64 exec, 0xffff')
        a(f'buffer_store_dword v250, v251, s[{ws_srd}:{ws_srd+3}], s72 offen')
        a('s_waitcnt vmcnt(0)')
        a('s_mov_b64 exec, s[92:93]')
```

```python
from asmlib import *
from layout import *

def srd(a, dst, base, size):
    a(f's_mov_b32 s{dst}, s{base}')
    a(f's_and_b32 s{dst+1}, s{base+1}, 0xffff')
    a(f's_mov_b32 s{dst+2}, {size}')
    a(f's_mov_b32 s{dst+3}, 0x20000')

RING = [0, 28672, 57344, 86016, 114688]
PERM = {1:0, 2:2, 3:1, 4:3, 0:4}
def slotaddr(s): return RING[PERM[s % 5]]
ONES = 131072
SCR  = 136192
QST  = 154624
GST  = 162816
LDS_TOTAL = 163840

sX=20; sWA=24; sWS=28; sWB=32; sT=36
sWAVE=40; sHP=41; sTB=42; sH=43; sJ=44
sNON=64
NEG = 0xf149f2ca
SPIN_MAX = 1 << 18

class G:
    pass

def flag_store(a, voff, soff_sgpr, vpair):
    a(f'buffer_store_dwordx2 {v(vpair,2)}, v{voff}, s[{sWS}:{sWS+3}], s{soff_sgpr} offen sc1')

def emit_poll(a, name, nload, vdst, voff, soff_sgpr, first_issued=True, tmp=45):
    top = a.newlabel(name+'_poll'); ok = a.newlabel(name+'_ok')
    a(f's_mov_b32 s{tmp}, {SPIN_MAX}')
    if not first_issued:
        a(f's_branch {top}_ld')
    a.label(top)
    for i in range(nload):
        if i == 0:
            a(f'v_cmp_eq_u32 s[46:47], s{sNON}, v{vdst}')
            a('s_nop 1')
        else:
            a(f'v_cmp_eq_u32 vcc, s{sNON}, v{vdst+2*i}')
            a('s_nop 1')
            a('s_and_b64 s[46:47], s[46:47], vcc')
        a(f'v_cmp_eq_u32 vcc, s{sNON+1}, v{vdst+2*i+1}')
        a('s_nop 1')
        a('s_and_b64 s[46:47], s[46:47], vcc')
    a('s_cmp_eq_u64 s[46:47], exec')
    a(f's_cbranch_scc1 {ok}')
    a(f's_sub_u32 s{tmp}, s{tmp}, 1')
    a(f's_cbranch_scc1 {ok}')
    a('s_sleep 1')
    a.label(top + '_ld')
    for i in range(nload):
        a(f'buffer_load_dwordx2 {v(vdst+2*i,2)}, v{voff}, s[{sWS}:{sWS+3}], s{soff_sgpr} offen offset:{512*i} sc1')
    a('s_waitcnt vmcnt(0)')
    a(f's_branch {top}')
    a.label(ok)

QA=8; QAb=12
S=[16,32]; P=[48,56]; O=[64,80]
K=[96,100]; V=[104,112]
CF=120; CL=136
vKa=152; vVa=153; vVs=154; vG=155; vGA=156; vL16=157; vT=158
QB=164
vFL=168
vNON=172; vZ=174; vL8=175

def mm(d, A, B, C):
    c = C if isinstance(C, str) else v(C, 16)
    return f'v_mfma_f32_32x32x16_bf16 {v(d,16)}, {v(A,4)}, {v(B,4)}, {c}'

def unit(a, s, p, mf, slots, pos=(0,6,11)):
    ci = 0; mi = 0
    for i in range(16):
        while mi < 3 and i == pos[mi]:
            if mf[mi] is not None: a(mf[mi])
            for x in slots[mi]: a(x)
            mi += 1
        a(f'v_exp_f32 v{s+i}, v{s+i}')
        if i % 2 == 1 and i >= 3:
            a(f'v_cvt_pk_bf16_f32 v{p+ci}, v{s+2*ci}, v{s+2*ci+1}'); ci += 1
    assert ci == 7
    a(f'v_cvt_pk_bf16_f32 v{p+7}, v{s+14}, v{s+15}')

def gen_fused(name, stamp=False, upto='all'):
    a = Asm()
    st = Stamps(a, stamp, 0)
    WSZ = WS_USED + ((4<<20) if stamp else 0)
    a(f'.globl {name}')
    a('.p2align 8')
    a(f'.type {name},@function')
    a.label(name)
    end = name + '_end'
    a('s_cmp_ge_u32 s2, 256')
    a(f's_cbranch_scc1 {end}')
    st.start()
    a('s_load_dwordx4 s[4:7], s[0:1], 0')
    a('s_load_dwordx2 s[10:11], s[0:1], 72')
    a('s_load_dwordx4 s[12:15], s[0:1], 32')
    a('s_load_dwordx4 s[16:19], s[0:1], 48')
    a('s_load_dwordx2 s[8:9], s[0:1], 16')
    a('v_lshrrev_b32 v2, 6, v0')
    a('v_and_b32 v1, 63, v0')
    a(f'v_readfirstlane_b32 s{sWAVE}, v2')
    a('s_and_b32 s45, s2, 7')
    a('s_lshl_b32 s45, s45, 1')
    a('s_lshr_b32 s46, s2, 7')
    a(f's_add_u32 s{sHP}, s45, s46')
    a(f's_bfe_u32 s{sTB}, s2, 0x40003')
    a(f's_and_b32 s45, s{sTB}, 1')
    a(f's_lshl_b32 s{sH}, s{sHP}, 1')
    a(f's_add_u32 s{sH}, s{sH}, s45')
    a(f's_lshr_b32 s{sJ}, s{sTB}, 1')
    a('s_waitcnt lgkmcnt(0)')
    srd(a, sX, 4, 2048*1024)
    srd(a, sWA, 6, 512*3072)
    a(f's_cmp_ge_u32 s{sWAVE}, 4')
    a(f's_cbranch_scc1 {name}_loader')

    def common_late():
        srd(a, sWS, 10, WSZ)
        a(f's_add_u32 s66, s10, {FX_OFF}')
        a('s_addc_u32 s67, s11, 0')
        a(f's_load_dwordx2 s[{sNON}:{sNON+1}], s[66:67], 0')
        a('s_waitcnt lgkmcnt(0)')
        a(f's_add_u32 s{sNON}, s{sNON}, 1')
        a(f's_addc_u32 s{sNON+1}, s{sNON+1}, 0')
        a(f'v_mov_b32 v{vNON}, s{sNON}')
        a(f'v_mov_b32 v{vNON+1}, s{sNON+1}')
        a(f'v_mov_b32 v{vZ}, 0')
        a(f'v_lshlrev_b32 v{vL16}, 4, v1')
        a(f'v_lshlrev_b32 v{vL8}, 3, v1')

    pXA = [[8,9,10,11],[13,14,15,16],[18,19,20,21]]; pW = [12,17,22]; pGW = 23
    FR = 24
    aQ, aK, aV, aG = 104, 120, 136, 176
    bQ, bK, bV = 192, 208, 224
    TT = 24
    common_late()
    a('v_and_b32 v2, 31, v1')
    a('v_lshrrev_b32 v3, 5, v1')
    a(f's_lshl_b32 s45, s{sWAVE}, 5')
    a('v_add_u32 v4, s45, v2')
    a('v_bfe_u32 v5, v4, 1, 3')
    a('v_xor_b32 v5, v5, v3')
    a('v_lshlrev_b32 v5, 4, v5')
    a('v_lshl_add_u32 v8, v4, 7, v5')
    a('v_xor_b32 v9, 32, v8')
    a('v_xor_b32 v10, 64, v8')
    a('v_xor_b32 v11, 0x60, v8')
    a('v_bfe_u32 v4, v1, 2, 2')
    a('v_lshl_add_u32 v4, v3, 3, v4')
    a('v_lshlrev_b32 v4, 6, v4')
    a('v_bfe_u32 v5, v1, 4, 1')
    a('v_lshl_add_u32 v4, v5, 5, v4')
    a('v_and_b32 v5, 3, v1')
    a('v_lshl_add_u32 v4, v5, 3, v4')
    a('v_add_u32 v12, 16384, v4')
    for b in (1,2):
        off = RING[2*b]
        for kk in range(4): a(f'v_add_u32 v{pXA[b][kk]}, {off}, v{pXA[0][kk]}')
        a(f'v_add_u32 v{pW[b]}, {off}, v{pW[0]}')
    a(f'v_lshlrev_b32 v{pGW}, 4, v3')
    a(f'v_add_u32 v{pGW}, {GST}, v{pGW}')
    q = DSQ(a)
    def fset(n): return FR + 20*(n & 3)
    def reads(n):
        s_, kk = divmod(n, 4)
        sa = slotaddr(s_)
        b = RING.index(sa) // 2
        rel = sa - RING[2*b]
        f = fset(n)
        out = [(f'ds_read_b128 {v(f,4)}, v{pXA[b][kk]} offset:{rel}', (n,'x'))]
        for g in range(3):
            o = rel + g*4096 + kk*1024
            out.append((f'ds_read_b64_tr_b16 {v(f+4+4*g,2)}, v{pW[b]} offset:{o}', (n,f'w{g}')))
            out.append((f'ds_read_b64_tr_b16 {v(f+6+4*g,2)}, v{pW[b]} offset:{o+256}', (n,f'w{g}')))
        if n < 32:
            out.append((f'ds_read_b128 {v(f+16,4)}, v{pGW} offset:{n*32}', (n,'g')))
        return out
    def pm(n, g):
        f = fset(n); x = f
        accs = (aQ,aK,aV,aG) if n < 32 else (bQ,bK,bV)
        d = accs[g]; first = n in (0, 32)
        c = '0' if first else d
        w = f+4+4*g
        if g == 2: return mm(d, x, w, c)
        return mm(d, w, x, c)
    def p_epilogue(br):
        Qa, Ka, Va = (aQ,aK,aV) if br == 0 else (bQ,bK,bV)
        T = 240
        a(f's_lshl_b32 s45, s{sHP}, 1')
        a(f's_add_u32 s45, s45, {br*32}')
        a('s_lshl_b32 s45, s45, 6')
        a(f's_lshl_b32 s46, s{sTB}, 2')
        a('s_add_u32 s45, s45, s46')
        a(f's_add_u32 s45, s45, s{sWAVE}')
        a('s_lshl_b32 s46, s45, 10')
        a('s_lshl_b32 s47, s45, 11')
        a(f's_add_u32 s47, s47, {KV_OFF}')
        a(f's_mov_b32 s48, {f2u(C_SCALE):#x}')
        a(f's_mov_b32 s49, {f2u(C_SCALE):#x}')
        for i in range(8): a(f'v_cvt_pk_bf16_f32 v{T+i}, v{Ka+2*i}, v{Ka+2*i+1}')
        a(f's_add_u32 s50, s47, 131072')
        a(f'buffer_store_dwordx4 {v(T,4)}, v{vL16}, s[{sWS}:{sWS+3}], s47 offen sc1')
        a(f'buffer_store_dwordx4 {v(T+4,4)}, v{vL16}, s[{sWS}:{sWS+3}], s50 offen sc1')
        a('v_bfe_u32 v4, v1, 4, 1')
        a('v_lshlrev_b32 v4, 17, v4')
        a('v_lshrrev_b32 v5, 5, v1')
        a('v_lshl_add_u32 v4, v5, 8, v4')
        a('v_and_b32 v5, 15, v1')
        a('v_lshl_add_u32 v4, v5, 4, v4')
        for i in range(8): a(f'v_cvt_pk_bf16_f32 v{T+8+i}, v{Va+2*i}, v{Va+2*i+1}')
        a(f'buffer_store_dwordx4 {v(T+8,4)}, v4, s[{sWS}:{sWS+3}], s47 offen offset:1024 sc1')
        a(f'buffer_store_dwordx4 {v(T+12,4)}, v4, s[{sWS}:{sWS+3}], s47 offen offset:1536 sc1')
        for i in range(8): a(f'v_pk_mul_f32 {v(Qa+2*i,2)}, {v(Qa+2*i,2)}, s[48:49]')
        for i in range(8): a(f'v_cvt_pk_bf16_f32 v{Ka+i}, v{Qa+2*i}, v{Qa+2*i+1}')
        a(f's_add_u32 s50, s46, 65536')
        a(f'buffer_store_dwordx4 {v(Ka,4)}, v{vL16}, s[{sWS}:{sWS+3}], s46 offen sc1')
        a(f'buffer_store_dwordx4 {v(Ka+4,4)}, v{vL16}, s[{sWS}:{sWS+3}], s50 offen sc1')
        if br == 0:
            g = Va
            a(f'v_cvt_pk_bf16_f32 v{g}, v{aG}, v{aG}')
            a(f'v_lshlrev_b32 v{g}, 16, v{g}')
            a(f'v_mul_f32 v{g}, 0xbfb8aa3b, v{g}')
            a(f'v_exp_f32 v{g}, v{g}')
            a('s_nop 0')
            a(f'v_add_f32 v{g}, 1.0, v{g}')
            a(f'v_rcp_f32 v{g}, v{g}')
            a('s_nop 0')
            a(f'v_cvt_pk_bf16_f32 v{g}, v{g}, v{g}')
            a(f'v_lshlrev_b32 v{g}, 16, v{g}')
            a(f's_lshl_b32 s45, s{sHP}, 11')
            a(f's_lshl_b32 s46, s{sTB}, 7')
            a('s_add_u32 s45, s45, s46')
            a(f's_lshl_b32 s46, s{sWAVE}, 5')
            a('s_add_u32 s45, s45, s46')
            a('s_lshl_b32 s45, s45, 2')
            a(f's_add_u32 s45, s45, {G_OFF}')
            a('v_and_b32 v5, 31, v1')
            a('v_lshlrev_b32 v5, 2, v5')
            a(f'buffer_store_dword v{g}, v5, s[{sWS}:{sWS+3}], s45 offen sc1')
    def lane0_flag(soff_expr_emit):
        soff_expr_emit()
        a('s_mov_b64 exec, 1')
        flag_store(a, vZ, 45, vNON)
        a('s_mov_b64 exec, -1')
    a('s_barrier')
    st.mark(1)
    for n in (0, 1):
        for line, tag in reads(n): q.issue(line, tag)
    NST = 64
    for n in range(NST):
        s_, kk = divmod(n, 4)
        if kk == 2 and s_ < 15:
            q.waitall()
            a('s_barrier')
            if s_ in (3, 7, 11, 13): st.mark({3:2, 7:3, 11:4, 13:5}[s_])
        rd = reads(n+2) if n+2 < NST else []
        ng = 4 if n < 32 else 3
        ri = 0
        q.wait([(n,t) for t in ('x','w0','w1','w2','g')])
        for g in range(ng):
            a(pm(n, g))
            k = 3 if g < 2 else 2
            for _ in range(k):
                if ri < len(rd):
                    q.issue(*rd[ri]); ri += 1
        while ri < len(rd):
            q.issue(*rd[ri]); ri += 1
        if n == 35:
            p_epilogue(0)
        if n == 52:
            a('s_waitcnt vmcnt(0)')
            def e():
                a(f's_lshl_b32 s45, s{sHP}, 4')
                a(f's_add_u32 s45, s45, s{sTB}')
                a('s_lshl_b32 s45, s45, 2')
                a(f's_add_u32 s45, s45, s{sWAVE}')
                a('s_lshl_b32 s45, s45, 3')
                a(f's_add_u32 s45, s45, {FA_OFF}')
            lane0_flag(e)
    st.mark(6)
    a('s_barrier')
    a('s_nop 7')
    a('s_nop 1')
    p_epilogue(1)
    st.mark(7)
    a(f's_branch {name}_attn')

    a.label(name + '_loader')
    a(f's_sub_u32 s50, s{sWAVE}, 4')
    a('v_lshrrev_b32 v2, 3, v1')
    a('v_and_b32 v3, 7, v1')
    a('v_lshrrev_b32 v4, 1, v2')
    a('v_xor_b32 v5, v3, v4')
    a(f's_lshl_b32 s52, s{sTB}, 7')
    a('s_lshl_b32 s53, s50, 5')
    a('s_add_u32 s52, s52, s53')
    a('v_add_u32 v6, s52, v2')
    a('v_lshlrev_b32 v6, 10, v6')
    a('v_lshl_add_u32 v8, v5, 4, v6')
    a('v_add_u32 v9, 0x2000, v8')
    a('v_xor_b32 v9, 64, v9')
    a('v_add_u32 v10, 0x4000, v8')
    a('v_add_u32 v11, 0x4000, v9')
    a('v_lshrrev_b32 v5, 2, v1')
    a('s_lshl_b32 s53, s50, 4')
    a('v_add_u32 v5, s53, v5')
    a('v_mul_u32_u24 v5, 3072, v5')
    a('v_and_b32 v6, 3, v1')
    a('v_lshl_add_u32 v5, v6, 4, v5')
    a(f's_lshl_b32 s53, s{sHP}, 6')
    a('v_add_u32 v12, s53, v5')
    a('s_lshl_b32 s54, s50, 12')
    a('s_lshl_b32 s55, s50, 10')
    a('s_add_u32 s55, s55, 16384')
    def stage(s_):
        sa = slotaddr(s_); ks = s_ & 7
        wsrd = sWA if s_ < 8 else sWB
        a(f's_mov_b32 s56, {ks*128}')
        for qq in range(4):
            a(f's_add_u32 m0, s54, {sa+qq*1024}')
            if qq: a('s_nop 0')
            else: a(f's_mov_b32 s57, {ks*196608}')
            a(f'buffer_load_dwordx4 v{8+qq}, s[{sX}:{sX+3}], s56 offen lds')
        for g in range(3):
            a(f's_add_u32 m0, s55, {sa+g*4096}')
            if g: a('s_add_u32 s57, s57, 1024')
            else: a('s_nop 0')
            a(f'buffer_load_dwordx4 v12, s[{wsrd}:{wsrd+3}], s57 offen lds')
    stage(0)
    srd(a, sT, 16, 1024)
    a('v_lshlrev_b32 v13, 4, v1')
    a(f's_mov_b32 m0, {GST}')
    a('s_nop 0')
    a(f'buffer_load_dwordx4 v13, s[{sT}:{sT+3}], 0 offen lds')
    stage(1)
    srd(a, sWB, 12, 512*3072)
    common_late()
    st.mark(1)
    a('s_waitcnt vmcnt(7)');  a('s_barrier')
    st.mark(2)
    stage(2); stage(3)
    a('s_waitcnt vmcnt(14)'); a('s_barrier')
    stage(4); stage(5)
    for s_ in range(2, 12):
        a('s_waitcnt vmcnt(21)'); a('s_barrier')
        stage(s_+4)
        if s_ == 7: st.mark(3)
    st.mark(4)
    a('s_lshl_b32 s58, s2, 2')
    a('s_add_u32 s58, s58, s50')
    a('s_lshr_b32 s59, s58, 9')
    a('s_cmp_eq_u32 s59, 0')
    a('s_cselect_b32 s60, s8, s14')
    a('s_cselect_b32 s61, s9, s15')
    srd(a, sT, 60, 512*1024)
    a('s_bfe_u32 s59, s58, 0x50004')
    a('s_and_b32 s62, s58, 15')
    a('v_lshrrev_b32 v20, 5, v1')
    a('v_and_b32 v21, 31, v1')
    a('s_lshl_b32 s59, s59, 14')
    a('s_lshl_b32 s62, s62, 6')
    a('s_add_u32 s59, s59, s62')
    a('v_lshlrev_b32 v20, 12, v20')
    a('v_lshl_add_u32 v20, v21, 1, v20')
    a('v_add_u32 v20, s59, v20')
    a('v_add_u32 v21, 0x2000, v20')
    for jj in range(8):
        a(f'buffer_load_ushort v{24+jj}, v{20+(jj>>2)}, s[{sT}:{sT+3}], 0 offen offset:{(jj&3)*1024}')
    a('s_waitcnt vmcnt(29)'); a('s_barrier')
    a('s_waitcnt vmcnt(22)'); a('s_barrier')
    a('s_waitcnt vmcnt(15)'); a('s_barrier')
    a(f's_lshl_b32 s59, s{sHP}, 9')
    a(f's_add_u32 s59, s59, {FA_OFF}')
    a(f'buffer_load_dwordx2 {v(vFL,2)}, v{vL8}, s[{sWS}:{sWS+3}], s59 offen sc1')
    a('s_waitcnt vmcnt(0)'); a('s_barrier')
    for r in range(4):
        a(f'v_lshl_or_b32 v{36+r}, v{25+2*r}, 16, v{24+2*r}')
    a('s_lshl_b32 s58, s58, 10')
    a(f's_add_u32 s58, s58, {WOF_OFF}')
    a(f'buffer_store_dwordx4 v[36:39], v{vL16}, s[{sWS}:{sWS+3}], s58 offen sc1')
    st.mark(5)
    emit_poll(a, name+'_fa', 1, vFL, vL8, 59)
    st.mark(6)
    a(f's_lshl_b32 s60, s{sH}, 17')
    a(f's_add_u32 s60, s60, {KV_OFF}')
    a('s_lshl_b32 s61, s50, 10')
    a('s_add_u32 s62, s60, s61')
    for c in range(10):
        off = (c >> 1)*4096 + (c & 1)*65536
        a(f's_add_u32 m0, s61, {off}')
        a(f's_add_u32 s63, s62, {off}')
        a(f'buffer_load_dwordx4 v{vL16}, s[{sWS}:{sWS+3}], s63 offen sc1 lds')
        if c == 1:
            a(f's_lshl_b32 s45, s{sH}, 6')
            a(f's_lshl_b32 s46, s{sJ}, 3')
            a('s_add_u32 s45, s45, s46')
            a('s_lshl_b32 s46, s50, 1')
            a('s_add_u32 s45, s45, s46')
            a('s_lshl_b32 s45, s45, 10')
            a('s_lshl_b32 s46, s50, 11')
            a(f's_add_u32 m0, s46, {QST}')
            a('s_nop 0')
            a(f'buffer_load_dwordx4 v{vL16}, s[{sWS}:{sWS+3}], s45 offen sc1 lds')
            a(f'buffer_load_dwordx4 v{vL16}, s[{sWS}:{sWS+3}], s45 offen offset:1024 sc1 lds')
            a(f's_lshl_b32 s45, s{sHP}, 13')
            a(f's_lshl_b32 s46, s{sJ}, 10')
            a('s_add_u32 s45, s45, s46')
            a(f's_add_u32 s45, s45, {G_OFF}')
            a(f's_mov_b32 m0, {GST}')
            a('s_nop 0')
            a(f'buffer_load_dwordx4 v{vL16}, s[{sWS}:{sWS+3}], s45 offen sc1 lds')
    st.mark(7)
    a('s_barrier')
    a.label(name + '_attn')
    g_ = G(); g_.a = a; g_.st = st; g_.name = name; g_.end = end; g_.upto = upto; g_.stamp = stamp
    from fused_attn import emit_attn
    emit_attn(g_)
    a.label(end)
    a('s_endpgm')
    return a.text(), dict(name=name, vgpr=256, sgpr=96, lds=LDS_TOTAL, block=512, grid=256)
```

```python
from asmlib import *
from layout import *
from fused import *

def emit_attn(g):
    a = g.a; st = g.st; name = g.name; end = g.end
    WS = f's[{sWS}:{sWS+3}]'
    sQP=48; sKH=49; sKVB=60; sFT=52; sCNT=57; sPASS=58; sN=56; sDM=53; sDS=54; sDL=55
    def lane0_store(soff):
        a('s_mov_b64 exec, 1')
        flag_store(a, vZ, soff, vNON)
        a('s_mov_b64 exec, -1')
    a(f's_and_b32 s{sQP}, s{sWAVE}, 3')
    a(f's_lshr_b32 s{sKH}, s{sWAVE}, 2')
    a(f's_lshl_b32 s{sKVB}, s{sH}, 17')
    a(f's_add_u32 s{sKVB}, s{sKVB}, {KV_OFF}')
    a(f's_cmp_ge_u32 s{sWAVE}, 5')
    a(f's_cbranch_scc1 {name}_noones')
    for r in range(4): a(f'v_mov_b32 v{vT+2+r}, 0x3f803f80')
    a('v_lshlrev_b32 v3, 4, v0')
    a(f'v_add_u32 v3, {ONES}, v3')
    a(f'ds_write_b128 v3, {v(vT+2,4)}')
    a.label(name + '_noones')
    a('v_and_b32 v2, 31, v1')
    a('v_lshrrev_b32 v3, 5, v1')
    a('v_and_b32 v4, 15, v1')
    a('v_lshlrev_b32 v4, 4, v4')
    a('v_lshl_add_u32 v5, v3, 8, v4')
    a('v_add_u32 v5, 1024, v5')
    a(f'v_add_u32 v4, {ONES}, v4')
    a('v_bfe_u32 v6, v1, 4, 1')
    a('v_cmp_eq_u32 s[62:63], 1, v6')
    a(f's_lshl_b32 s45, s{sKH}, 16')
    a(f'v_add_u32 v{vKa}, s45, v{vL16}')
    a('v_add_u32 v6, s45, v5')
    a('v_mov_b32 v7, 4096')
    a(f'v_cndmask_b32_e64 v{vVa}, v6, v4, s[62:63]')
    a(f'v_cndmask_b32_e64 v{vVs}, v7, 0, s[62:63]')
    for x in (0,1):
        for r in range(16): a(f'v_mov_b32 v{O[x]+r}, 0')
    for r in range(8): a(f'v_mov_b32 v{P[1]+r}, 0')
    for r in range(8): a(f'v_mov_b32 v{V[1]+r}, 0')
    a(f's_lshr_b32 s45, s{sWAVE}, 1')
    a('s_add_u32 s45, s45, 5')
    a('s_lshl_b32 s45, s45, 12')
    a(f's_and_b32 s46, s{sWAVE}, 1')
    a('s_lshl_b32 s46, s46, 16')
    a(f's_add_u32 s{sDM}, s45, s46')
    a(f's_add_u32 s{sDL}, s46, {15*4096}')
    a(f's_lshl_b32 s45, s{sQP}, 11')
    a(f's_add_u32 s45, s45, {QST}')
    a(f'v_add_u32 v6, s45, v{vL16}')
    a(f's_lshl_b32 s45, s{sQP}, 1')
    a(f's_add_u32 s45, s45, s{sKH}')
    a(f's_lshl_b32 s46, s{sJ}, 3')
    a(f's_add_u32 s{sFT}, s46, s45')
    a('s_lshl_b32 s45, s45, 7')
    a(f's_add_u32 s45, s45, {GST}')
    a('v_lshlrev_b32 v7, 2, v2')
    a(f'v_add_u32 v{vGA}, s45, v7')
    a(f's_lshl_b32 s45, s{sWAVE}, 7')
    a(f's_add_u32 s45, s45, {GST}')
    a(f'v_add_u32 v{vG}, s45, v7')
    a(f's_cmp_lt_u32 s{sWAVE}, 4')
    a(f's_cbranch_scc1 {name}_ba')
    a('s_waitcnt vmcnt(0)')
    a.label(name + '_ba')
    a('s_waitcnt lgkmcnt(0)')
    a('s_barrier')
    st.mark(8)
    Q = [QA, QAb]
    def kA(t): return f'ds_read_b128 {v(K[t&1],4)}, v{vKa} offset:{t*2048}'
    def vA(t,u): return f'ds_read_b128 {v(V[t&1]+4*u,4)}, v{vVa} offset:{t*2048+u*512}'
    a(kA(0))
    a(f'ds_read_b128 {v(QA,4)}, v6')
    a(f'ds_read_b128 {v(QAb,4)}, v6 offset:1024')
    a(vA(0,0)); a(vA(0,1))
    a(f'ds_read_b32 v{vGA}, v{vGA}')
    a(f'ds_read_b32 v{vG}, v{vG}')
    a('s_waitcnt lgkmcnt(4)')
    a(mm(S[0], K[0], Q[0], '0'))
    a('s_nop 8')
    def body(dma):
        for t in (0,1):
            tp = (t-1) & 1
            mf = [mm(S[1], K[t&1], Q[1], '0'), mm(O[1], V[tp], P[1], O[1]), mm(O[1], V[tp]+4, P[1]+4, O[1])]
            sl = [[kA(t+1)], [f's_sub_u32 s{sCNT}, s{sCNT}, 1'] if t == 1 else [], ['s_waitcnt lgkmcnt(0)']]
            if dma and t == 0:
                sl[1] = [f's_mov_b32 m0, s{sDM}', f's_add_u32 s{sDS}, s{sKVB}, s{sDM}']
            unit(a, S[0], P[0], mf, sl)
            mf = [mm(S[0], K[(t+1)&1], Q[0], '0'), mm(O[0], V[t&1], P[0], O[0]), mm(O[0], V[t&1]+4, P[0]+4, O[0])]
            sl = [[vA(t+1,0)], [vA(t+1,1)], []]
            if dma:
                d = lambda i: f'buffer_load_dwordx4 v{vL16}, {WS}, s{sDS} offen offset:{i*1024} sc1 lds'
                sl[2] = [d(2*t), d(2*t+1)]
                if t == 1:
                    sl[2] += [f's_add_u32 s{sDM}, s{sDM}, 16384', f's_min_u32 s{sDM}, s{sDM}, s{sDL}']
            unit(a, S[1], P[1], mf, sl)
        a(f'v_add_u32 v{vKa}, 4096, v{vKa}')
        a(f'v_add_u32 v{vVa}, v{vVs}, v{vVa}')
    l1 = name + '_aloop1'
    a(f's_mov_b32 s{sCNT}, 3')
    a('.p2align 6')
    a.label(l1)
    body(True)
    a(f's_cmp_lg_u32 s{sCNT}, 0')
    a(f's_cbranch_scc1 {l1}')
    a(f's_mov_b32 s{sCNT}, 0')
    a(f's_mov_b32 s{sPASS}, 0')
    l2 = name + '_aloop2'
    a('.p2align 6')
    a.label(l2)
    body(False)
    a(f's_cbranch_scc0 {l2}')
    a(f's_cmp_eq_u32 s{sPASS}, 3')
    a(f's_cbranch_scc1 {name}_adone')
    a(f's_cmp_eq_u32 s{sPASS}, 1')
    a(f's_cbranch_scc1 {name}_p1')
    a(f's_cmp_eq_u32 s{sPASS}, 2')
    a(f's_cbranch_scc1 {name}_p2')
    a('s_waitcnt vmcnt(8)')
    a(f's_lshl_b32 s45, s{sHP}, 4')
    a(f's_add_u32 s45, s45, s{sTB}')
    a('s_lshl_b32 s45, s45, 3')
    a(f's_add_u32 s45, s45, s{sWAVE}')
    a('s_lshl_b32 s45, s45, 3')
    a(f's_add_u32 s45, s45, {FB_OFF}')
    lane0_store(45)
    a('s_barrier')
    a(f's_mov_b32 s{sCNT}, 2')
    a(f's_mov_b32 s{sPASS}, 1')
    a(f's_branch {l2}')
    a.label(name + '_p1')
    a(f's_lshl_b32 s59, s{sHP}, 10')
    a(f's_add_u32 s59, s59, {FB_OFF}')
    a(f's_cmp_lg_u32 s{sWAVE}, 7')
    a(f's_cbranch_scc1 {name}_p1b')
    for i in range(2):
        a(f'buffer_load_dwordx2 {v(vFL+2*i,2)}, v{vL8}, {WS}, s59 offen offset:{512*i} sc1')
    a.label(name + '_p1b')
    a(f's_mov_b32 s{sCNT}, 0')
    a(f's_mov_b32 s{sPASS}, 2')
    a(f's_branch {l2}')
    a.label(name + '_p2')
    a('s_waitcnt vmcnt(0)')
    a(f's_cmp_lg_u32 s{sWAVE}, 7')
    a(f's_cbranch_scc1 {name}_p2b')
    emit_poll(a, name+'_fb', 2, vFL, vL8, 59)
    a.label(name + '_p2b')
    a('s_barrier')
    a(f's_lshl_b32 s45, s{sJ}, 3')
    a(f's_lshl_b32 s46, s{sWAVE}, 1')
    a('s_add_u32 s45, s45, s46')
    a('s_sub_u32 s45, s45, 8')
    a('s_max_i32 s45, s45, 0')
    a(f's_add_u32 s46, s{sH}, 32')
    a('s_lshl_b32 s46, s46, 6')
    a('s_add_u32 s45, s45, s46')
    a('s_lshl_b32 s45, s45, 11')
    a(f's_add_u32 s45, s45, {KV_OFF}')
    a(f's_lshl_b32 m0, s{sWAVE}, 12')
    a(f's_lshl_b32 s47, s{sJ}, 3')
    for i in range(4):
        a(f'buffer_load_dwordx4 v{vL16}, {WS}, s45 offen offset:{i*1024} sc1 lds')
    a('s_add_u32 s46, s46, s47')
    a(f's_add_u32 s46, s46, s{sWAVE}')
    a('s_lshl_b32 s46, s46, 10')
    a(f's_lshl_b32 s47, s{sWAVE}, 10')
    a(f's_add_u32 m0, s47, {QST}')
    a('s_nop 0')
    a(f'buffer_load_dwordx4 v{vL16}, {WS}, s46 offen sc1 lds')
    a(f's_mov_b32 s{sCNT}, 7')
    a(f's_mov_b32 s{sPASS}, 3')
    a(f's_branch {l2}')
    a.label(name + '_adone')
    st.mark(9)
    a(mm(O[1], V[1], P[1], O[1]))
    a(mm(O[1], V[1]+4, P[1]+4, O[1]))
    a(f's_mul_i32 s45, s{sWAVE}, 2304')
    a(f's_add_u32 s45, s45, {SCR}')
    a(f'v_add_u32 v2, s45, v{vL16}')
    a('v_lshlrev_b32 v3, 2, v1')
    a('v_add_u32 v3, s45, v3')
    a(f's_xor_b32 s46, s{sWAVE}, 4')
    a('s_mul_i32 s46, s46, 2304')
    a(f's_add_u32 s46, s46, {SCR}')
    a(f'v_add_u32 v6, s46, v{vL16}')
    a('v_lshlrev_b32 v7, 2, v1')
    a('v_add_u32 v7, s46, v7')
    a(f's_cmp_eq_u32 s{sKH}, 0')
    a(f's_cbranch_scc1 {name}_cmb0')
    a(f'ds_write_b128 v2, {v(O[0],4)}')
    a(f'ds_write_b128 v2, {v(O[0]+4,4)} offset:1024')
    a(f'ds_write_b32 v3, v{O[0]+8} offset:2048')
    a('s_nop 7')
    for r in range(9): a(f'v_mov_b32 v{O[0]+r}, v{O[1]+r}')
    a(f's_branch {name}_cmb1')
    a.label(name + '_cmb0')
    a('s_nop 7')
    a('s_nop 3')
    a(f'ds_write_b128 v2, {v(O[1],4)}')
    a(f'ds_write_b128 v2, {v(O[1]+4,4)} offset:1024')
    a(f'ds_write_b32 v3, v{O[1]+8} offset:2048')
    a.label(name + '_cmb1')
    a('s_waitcnt vmcnt(0) lgkmcnt(0)')
    a('s_barrier')
    a(f'ds_read_b128 {v(S[0],4)}, v6')
    a(f'ds_read_b128 {v(S[0]+4,4)}, v6 offset:1024')
    a(f'ds_read_b32 v{S[0]+8}, v7 offset:2048')
    a(f's_lshl_b32 s45, s{sWAVE}, 10')
    a(f's_add_u32 s45, s45, {QST}')
    a(f'v_add_u32 v6, s45, v{vL16}')
    a(f'ds_read_b128 {v(QB,4)}, v6')
    a(f's_add_u32 s45, s{sWAVE}, 8')
    a('s_lshl_b32 s45, s45, 11')
    a('v_add_u32 v6, s45, v5')
    a(f'v_cndmask_b32_e64 v{vVa}, v6, v4, s[62:63]')
    a('v_mov_b32 v7, 2048')
    a(f'v_cndmask_b32_e64 v{vVs}, v7, 0, s[62:63]')
    a(f's_lshl_b32 s45, s{sWAVE}, 11')
    a(f'v_add_u32 v{vKa}, s45, v{vL16}')
    def kB(i): return f'ds_read_b128 {v(K[i&1],4)}, v{vKa} offset:{(8-i)*2048}'
    def vB(i, u): return f'ds_read_b128 {v(V[i&1]+4*u,4)}, v{vVa} offset:{u*512}'
    a(kB(0)); a(kB(1))
    a('s_waitcnt lgkmcnt(3)')
    for r in range(9): a(f'v_add_f32 v{O[0]+r}, v{O[0]+r}, v{S[0]+r}')
    a(f'v_rcp_f32 v{vT+1}, v{O[0]+8}')
    a('s_nop 0')
    a(f'v_mul_f32 v{vT}, v{vGA}, v{vT+1}')
    for r in range(8): a(f'v_mul_f32 v{O[0]+r}, v{O[0]+r}, v{vT}')
    for r in range(4): a(f'v_cvt_pk_bf16_f32 v{vT+2+r}, v{O[0]+2*r}, v{O[0]+2*r+1}')
    a(f's_lshl_b32 s45, s{sFT}, 5')
    a(f's_add_u32 s45, s45, s{sH}')
    a('s_lshl_b32 s46, s45, 3')
    a(f's_add_u32 s{sDS}, s46, {FOA_OFF}')
    a('s_lshl_b32 s45, s45, 10')
    a(f's_add_u32 s45, s45, {OF_OFF}')
    a(f'buffer_store_dwordx4 {v(vT+2,4)}, v{vL16}, {WS}, s45 offen sc1')
    st.mark(10)
    if g.upto == 'A':
        a('s_waitcnt vmcnt(0)'); st.flush(sWAVE, sWS, WS_USED); a('s_endpgm'); return
    a(f's_lshl_b32 s45, s{sJ}, 3')
    a(f's_add_u32 s43, s{sH}, 0') if False else None
    sGT = 61
    a(f's_add_u32 s{sGT}, s45, s{sWAVE}')
    a(f's_min_u32 s{sN}, s{sGT}, 8')
    a(f's_add_u32 s{sN}, s{sN}, 1')
    a('v_and_b32 v2, 31, v1')
    a('v_lshrrev_b32 v3, 5, v1')
    a('v_lshlrev_b32 v3, 2, v3')
    a('v_sub_u32 v2, v2, v3')
    a(f'v_mov_b32 v3, {NEG:#x}')
    for r in range(16):
        b = (r & 3) + 8*(r >> 2)
        sp = 46 + 2*(r & 1) if False else None
        a(f'v_cmp_gt_i32 vcc, {b}, v2')
        a(f'v_mov_b32 v{O[0]+r}, 0')
        a('s_nop 0')
        a(f'v_cndmask_b32_e64 v{CF+r}, v3, 0, vcc')
        a(f'v_cndmask_b32_e64 v{CL+r}, 0, v3, vcc')
    for r in range(8): a(f'v_mov_b32 v{P[1]+r}, 0')
    for r in range(8): a(f'v_mov_b32 v{V[1]+r}, 0')
    a('s_waitcnt lgkmcnt(0)')
    a(mm(S[0], K[0], QB, CL))
    a('s_nop 7')
    a('s_nop 1')
    def foa_hook():
        a('s_waitcnt vmcnt(0)')
        lane0_store(sDS)
    tails = [name+'_btail0', name+'_btail1']
    for i in range(8):
        a(f's_cmp_le_u32 s{sN}, {i+1}')
        a(f's_cbranch_scc1 {tails[i&1]}')
        if i > 0: a('s_waitcnt lgkmcnt(0)')
        up = (i-1) & 1
        mf = [mm(S[(i+1)&1], K[(i+1)&1], QB, CF if i+1 == 8 else '0'),
              mm(O[0], V[up], P[up], O[0]), mm(O[0], V[up]+4, P[up]+4, O[0])]
        sl = [[vB(i,0), vB(i,1)] + ([kB(i+2)] if i+2 <= 8 else []), [], []]
        unit(a, S[i&1], P[i&1], mf, sl)
        a(f'v_sub_u32 v{vVa}, v{vVa}, v{vVs}')
        if i == 3: foa_hook()
    a(f's_branch {tails[0]}')
    for par in (0,1):
        a.label(tails[par])
        up = par ^ 1
        a('s_waitcnt lgkmcnt(0)')
        a(vB(par,0)); a(vB(par,1))
        mf = [None, mm(O[0], V[up], P[up], O[0]), mm(O[0], V[up]+4, P[up]+4, O[0])]
        unit(a, S[par], P[par], mf, [[],[],[]])
        a('s_waitcnt lgkmcnt(0)')
        a(mm(O[0], V[par], P[par], O[0]))
        a(mm(O[0], V[par]+4, P[par]+4, O[0]))
        if par == 0: a(f's_branch {name}_bdone')
    a.label(name+'_bdone')
    a(f's_cmp_gt_u32 s{sN}, 4')
    a(f's_cbranch_scc1 {name}_bdone2')
    foa_hook()
    a.label(name+'_bdone2')
    st.mark(11)
    a(f'v_sub_f32 v{vT}, 1.0, v{vG}')
    a(f'v_cvt_pk_bf16_f32 v{vT}, v{vT}, v{vT}')
    a(f'v_lshlrev_b32 v{vT}, 16, v{vT}')
    a('s_nop 7')
    a('s_nop 1')
    a(f'v_rcp_f32 v{vT+1}, v{O[0]+8}')
    a('s_nop 0')
    a(f'v_mul_f32 v{vT}, v{vT}, v{vT+1}')
    for r in range(8): a(f'v_mul_f32 v{O[0]+r}, v{O[0]+r}, v{vT}')
    for r in range(4): a(f'v_cvt_pk_bf16_f32 v{vT+2+r}, v{O[0]+2*r}, v{O[0]+2*r+1}')
    a(f's_lshl_b32 s45, s{sGT}, 5')
    a(f's_add_u32 s45, s45, s{sH}')
    a('s_lshl_b32 s46, s45, 3')
    a(f's_add_u32 s{sDS}, s46, {FOB_OFF}')
    a(f's_add_u32 s45, s45, {64*32}')
    a('s_lshl_b32 s45, s45, 10')
    a(f's_add_u32 s45, s45, {OF_OFF}')
    a(f'buffer_store_dwordx4 {v(vT+2,4)}, v{vL16}, {WS}, s45 offen sc1')
    if g.upto == 'B':
        a('s_waitcnt vmcnt(0)'); st.flush(sWAVE, sWS, WS_USED); a('s_endpgm'); return
    sOB=48; sCB=50; sTTr=51; sCT=52
    a(f's_lshr_b32 s45, s{sH}, 3')
    a(f's_lshl_b32 s{sOB}, s{sJ}, 2')
    a(f's_add_u32 s{sOB}, s{sOB}, s45')
    a(f's_and_b32 s{sCB}, s{sH}, 7')
    a(f's_and_b32 s{sTTr}, s{sWAVE}, 1')
    a(f's_bfe_u32 s{sCT}, s{sWAVE}, 0x10001')
    WB = [16, 80]; OB = [144, 192]; ACC = 208
    OBA = 176; WBA = 16; WBB = 80; ACC = 240
    a(f's_lshl_b32 s45, s{sKH}, 8')
    a(f's_lshl_b32 s46, s{sCB}, 1')
    a('s_add_u32 s45, s45, s46')
    a(f's_add_u32 s45, s45, s{sCT}')
    a('s_lshl_b32 s45, s45, 10')
    a(f's_add_u32 s53, s45, {WOF_OFF}')
    def wo_loads(br, dst):
        for i in range(16):
            a(f's_add_u32 s45, s53, {br*524288 + i*16384}')
            a(f'buffer_load_dwordx4 {v(dst+4*i,4)}, v{vL16}, {WS}, s45 offen sc1')
    a(f's_lshl_b32 s45, s{sOB}, 1')
    a(f's_add_u32 s45, s45, s{sTTr}')
    a('s_lshl_b32 s45, s45, 5')
    a(f's_lshl_b32 s46, s{sKH}, 4')
    a('s_add_u32 s45, s45, s46')
    a('s_lshl_b32 s45, s45, 10')
    a(f's_add_u32 s54, s45, {OF_OFF}') if False else a(f's_add_u32 s55, s45, {OF_OFF}')
    def o_loads(br, dst):
        for i in range(16):
            if i % 4 == 0: a(f's_add_u32 s45, s55, {br*64*32*1024 + i*1024}')
            a(f'buffer_load_dwordx4 {v(dst+4*i,4)}, v{vL16}, {WS}, s45 offen offset:{(i%4)*1024} sc1')
    wo_loads(0, WBA)
    a(f's_lshl_b32 s59, s{sOB}, 9')
    a(f's_add_u32 s59, s59, {FOA_OFF}')
    a(f's_cmp_lg_u32 s{sWAVE}, 0')
    a(f's_cbranch_scc1 {name}_t1')
    a(f'buffer_load_dwordx2 {v(vFL,2)}, v{vL8}, {WS}, s59 offen sc1')
    a.label(name + '_t1')
    a('s_waitcnt vmcnt(0)')
    lane0_store(sDS)
    a(f's_cmp_lg_u32 s{sWAVE}, 0')
    a(f's_cbranch_scc1 {name}_t2')
    emit_poll(a, name+'_foa', 1, vFL, vL8, 59)
    a.label(name + '_t2')
    a('s_barrier')
    st.mark(12)
    o_loads(0, OBA)
    wo_loads(1, WBB)
    a('s_waitcnt vmcnt(16)')
    for i in range(16):
        a(mm(ACC, WBA+4*i, OBA+4*i, '0' if i == 0 else ACC))
    a(f's_add_u32 s59, s59, {FOB_OFF-FOA_OFF}')
    a(f's_cmp_lg_u32 s{sWAVE}, 0')
    a(f's_cbranch_scc1 {name}_t3')
    emit_poll(a, name+'_fob', 1, vFL, vL8, 59, first_issued=False)
    a.label(name + '_t3')
    a('s_barrier')
    o_loads(1, OBA)
    a('s_waitcnt vmcnt(0)')
    st.mark(13)
    for i in range(16):
        a(mm(ACC, WBB+4*i, OBA+4*i, ACC))
    a(f's_and_b32 s45, s{sWAVE}, 3')
    a('s_lshl_b32 s45, s45, 12')
    a(f'v_add_u32 v3, s45, v{vL16}')
    a('s_nop 7')
    a('s_nop 3')
    a(f's_cmp_eq_u32 s{sKH}, 0')
    a(f's_cbranch_scc1 {name}_t4')
    for i in range(4): a(f'ds_write_b128 v3, {v(ACC+4*i,4)} offset:{i*1024}')
    a('s_waitcnt lgkmcnt(0)')
    a('s_barrier')
    if g.stamp: st.flush(sWAVE, sWS, WS_USED)
    a('s_endpgm')
    a.label(name + '_t4')
    srd(a, sT, 18, 2048*1024)
    a('s_barrier')
    for i in range(4): a(f'ds_read_b128 {v(16+4*i,4)}, v3 offset:{i*1024}')
    a('v_and_b32 v4, 31, v1')
    a(f's_lshl_b32 s45, s{sOB}, 6')
    a(f's_lshl_b32 s46, s{sTTr}, 5')
    a('s_add_u32 s45, s45, s46')
    a('v_add_u32 v4, s45, v4')
    a('v_lshlrev_b32 v4, 10, v4')
    a('v_lshrrev_b32 v5, 5, v1')
    a('v_lshl_add_u32 v4, v5, 4, v4')
    a(f's_lshl_b32 s45, s{sCB}, 7')
    a(f's_lshl_b32 s46, s{sCT}, 6')
    a('s_add_u32 s45, s45, s46')
    a('s_waitcnt lgkmcnt(0)')
    for r in range(16): a(f'v_add_f32 v{ACC+r}, v{ACC+r}, v{16+r}')
    for r in range(8): a(f'v_cvt_pk_bf16_f32 v{32+r}, v{ACC+2*r}, v{ACC+2*r+1}')
    a('s_nop 1')
    a('v_permlane32_swap_b32 v32, v34')
    a('v_permlane32_swap_b32 v33, v35')
    a('v_permlane32_swap_b32 v36, v38')
    a('v_permlane32_swap_b32 v37, v39')
    a(f'buffer_store_dwordx4 v[32:35], v4, s[{sT}:{sT+3}], s45 offen')
    a(f'buffer_store_dwordx4 v[36:39], v4, s[{sT}:{sT+3}], s45 offen offset:32')
    a(f's_or_b32 s45, s2, s{sWAVE}')
    a('s_cmp_lg_u32 s45, 0')
    a(f's_cbranch_scc1 {name}_t5')
    a(f's_mov_b32 s45, {FX_OFF}')
    lane0_store(45)
    a.label(name + '_t5')
    if g.stamp:
        a('s_waitcnt vmcnt(0)')
        st.mark(14) if False else None
        st.flush(sWAVE, sWS, WS_USED)
```

```python
from asmlib import *
from layout import *

def srd(a, dst, base, size):
    a(f's_mov_b32 s{dst}, s{base}')
    a(f's_and_b32 s{dst+1}, s{base+1}, 0xffff')
    a(f's_mov_b32 s{dst+2}, {size}')
    a(f's_mov_b32 s{dst+3}, 0x20000')

NSLOT = 4
XREG = 0
WREG = 65536
K1_LDS = 163840

def gen_k1(name='proj_kernel', stamp=False, kidx=0):
    a = Asm()
    st = Stamps(a, stamp, kidx)
    WSZ = WS_USED + ((4<<20) if stamp else 0)
    a(f'.globl {name}')
    a('.p2align 8')
    a(f'.type {name},@function')
    a.label(name)
    end = name + '_end'
    a('s_cmp_ge_u32 s2, 256')
    a(f's_cbranch_scc1 {end}')
    st.start()
    a('s_load_dwordx4 s[4:7], s[0:1], 0')
    a('s_load_dwordx2 s[8:9], s[0:1], 16')
    a('s_load_dwordx4 s[12:15], s[0:1], 32')
    a('s_load_dwordx2 s[16:17], s[0:1], 48')
    a('s_load_dwordx2 s[18:19], s[0:1], 72')
    a('v_lshrrev_b32 v2, 6, v0')
    a('v_and_b32 v1, 63, v0')
    a('v_readfirstlane_b32 s40, v2')
    a('s_and_b32 s44, s2, 7')
    a('s_lshr_b32 s45, s2, 3')
    a('s_and_b32 s41, s44, 1')
    a('s_lshl_b32 s41, s41, 3')
    a('s_and_b32 s46, s45, 7')
    a('s_add_u32 s41, s41, s46')
    a('s_lshr_b32 s46, s44, 1')
    a('s_lshl_b32 s46, s46, 2')
    a('s_lshr_b32 s47, s45, 3')
    a('s_add_u32 s46, s46, s47')
    a('s_lshr_b32 s42, s46, 3')
    a('s_and_b32 s43, s46, 7')
    a('s_waitcnt lgkmcnt(0)')
    srd(a, 20, 4, 2048*1024)
    a('s_cmp_eq_u32 s42, 0')
    a('s_cselect_b32 s48, s6, s12')
    a('s_cselect_b32 s49, s7, s13')
    srd(a, 24, 48, 512*3072)
    srd(a, 28, 18, WSZ)
    a('s_cmp_ge_u32 s40, 4')
    a(f's_cbranch_scc1 {name}_loader')

    a('s_lshr_b32 s50, s40, 1')
    a('s_and_b32 s51, s40, 1')
    a('v_and_b32 v2, 31, v1')
    a('v_lshrrev_b32 v3, 5, v1')
    a('s_lshl_b32 s52, s50, 6')
    a('v_add_u32 v4, s52, v2')
    a('v_bfe_u32 v5, v4, 1, 3')
    a('v_xor_b32 v5, v5, v3')
    a('v_lshlrev_b32 v5, 4, v5')
    a('v_lshl_add_u32 v8, v4, 7, v5')
    a('v_xor_b32 v9, 32, v8')
    a('v_xor_b32 v10, 64, v8')
    a('v_xor_b32 v11, 0x60, v8')
    a('v_bfe_u32 v4, v1, 2, 2')
    a('v_and_b32 v5, 3, v1')
    a('v_bfe_u32 v6, v1, 4, 1')
    a('v_lshlrev_b32 v6, 1, v6')
    a('v_lshrrev_b32 v7, 1, v5')
    a('v_add_u32 v6, v6, v7')
    a('s_lshl_b32 s52, s51, 2')
    a('v_add_u32 v6, s52, v6')
    a('v_bfe_u32 v7, v4, 1, 1')
    a('v_lshlrev_b32 v7, 2, v7')
    a('v_xor_b32 v6, v6, v7')
    a('v_lshlrev_b32 v6, 4, v6')
    a('v_and_b32 v5, 1, v5')
    a('v_lshl_add_u32 v6, v5, 3, v6')
    a('v_lshl_add_u32 v4, v3, 3, v4')
    a('v_lshl_add_u32 v6, v4, 7, v6')
    a(f'v_add_u32 v12, {WREG}, v6')
    a(f'v_add_u32 v13, {WREG+49152}, v6')
    FR = 16
    ACC = 80
    def fset(n): return FR + 20*(n % 3)
    def acc(tt, g): return ACC + 16*(tt*3+g)
    q = DSQ(a)
    def reads(n):
        s_, kk = divmod(n, 4)
        slot = s_ % NSLOT
        f = fset(n)
        out = []
        xo = XREG + slot*16384
        wb = 12 if slot < 2 else 13
        wo = (slot & 1)*24576 + kk*2048
        out.append((f'ds_read_b128 {v(f,4)}, v{8+kk} offset:{xo}', (n,'x0')))
        for g in (0,1,2):
            out.append((f'ds_read_b64_tr_b16 {v(f+8+4*g,2)}, v{wb} offset:{wo+g*8192}', (n,f'w{g}')))
            out.append((f'ds_read_b64_tr_b16 {v(f+10+4*g,2)}, v{wb} offset:{wo+g*8192+512}', (n,f'w{g}')))
        out.append((f'ds_read_b128 {v(f+4,4)}, v{8+kk} offset:{xo+4096}', (n,'x1')))
        return out
    def mfma(n, tt, g, first):
        f = fset(n)
        x = v(f+4*tt, 4); w = v(f+8+4*g, 4); d = v(acc(tt,g), 16)
        c = '0' if first else d
        if g < 2: return f'v_mfma_f32_32x32x16_bf16 {d}, {w}, {x}, {c}'
        return f'v_mfma_f32_32x32x16_bf16 {d}, {x}, {w}, {c}'
    NST = 32
    a('s_barrier')
    st.mark(1)
    for n in (0, 1):
        for line, tag in reads(n): q.issue(line, tag)
    for n in range(NST):
        s_, kk = divmod(n, 4)
        if kk == 2 and s_ < 7:
            q.waitall()
            a('s_barrier')
            st.mark(2+s_)
        rd = reads(n+2) if n+2 < NST else []
        order = [(0,0),(0,1),(0,2),(1,0),(1,1),(1,2)]
        need = {(0,0):['x0','w0'],(0,1):['w1'],(0,2):['w2'],(1,0):['x1'],(1,1):[],(1,2):[]}
        ri = 0
        for mi,(tt,g) in enumerate(order):
            q.wait([(n,t) for t in need[(tt,g)]])
            a(mfma(n, tt, g, n == 0))
            k = 2 if mi < 4 else 0
            for _ in range(k):
                if ri < len(rd):
                    q.issue(*rd[ri]); ri += 1
        while ri < len(rd):
            q.issue(*rd[ri]); ri += 1
    st.mark(9)
    a('v_lshlrev_b32 v2, 4, v1')
    a('v_bfe_u32 v4, v1, 4, 1')
    a('v_lshlrev_b32 v4, 17, v4')
    a('v_lshl_add_u32 v4, v3, 8, v4')
    a('v_and_b32 v5, 15, v1')
    a('v_lshl_add_u32 v4, v5, 4, v4')
    a('s_lshl_b32 s52, s42, 5')
    a('s_lshl_b32 s53, s43, 2')
    a('s_add_u32 s52, s52, s53')
    a('s_lshl_b32 s53, s51, 1')
    a('s_add_u32 s52, s52, s53')
    a('s_lshl_b32 s53, s41, 2')
    a('s_lshl_b32 s54, s50, 1')
    a('s_add_u32 s53, s53, s54')
    a('s_lshl_b32 s54, s52, 6')
    a('s_add_u32 s54, s54, s53')
    a('s_lshl_b32 s55, s54, 10')
    a('s_lshl_b32 s56, s54, 11')
    a(f's_add_u32 s56, s56, {KV_OFF}')
    a(f's_mov_b32 s58, {f2u(C_SCALE):#x}')
    a(f's_mov_b32 s59, {f2u(C_SCALE):#x}')
    a('s_nop 4')
    T = FR
    for tt in (0,1):
        A_ = acc(tt,0)
        for i in range(8): a(f'v_pk_mul_f32 {v(A_+2*i,2)}, {v(A_+2*i,2)}, s[58:59]')
        for i in range(8): a(f'v_cvt_pk_bf16_f32 v{T+i}, v{A_+2*i}, v{A_+2*i+1}')
        a(f's_add_u32 s60, s55, {tt*1024}')
        a(f's_add_u32 s61, s55, {tt*1024+65536}')
        a(f'buffer_store_dwordx4 {v(T,4)}, v2, s[28:31], s60 offen')
        a(f'buffer_store_dwordx4 {v(T+4,4)}, v2, s[28:31], s61 offen')
        A_ = acc(tt,1)
        for i in range(8): a(f'v_cvt_pk_bf16_f32 v{T+8+i}, v{A_+2*i}, v{A_+2*i+1}')
        a(f's_add_u32 s60, s56, {tt*2048}')
        a(f's_add_u32 s61, s56, {tt*2048+131072}')
        a(f'buffer_store_dwordx4 {v(T+8,4)}, v2, s[28:31], s60 offen')
        a(f'buffer_store_dwordx4 {v(T+12,4)}, v2, s[28:31], s61 offen')
        A_ = acc(tt,2)
        for i in range(8): a(f'v_cvt_pk_bf16_f32 v{T+16+i}, v{A_+2*i}, v{A_+2*i+1}')
        a(f's_add_u32 s60, s56, {tt*2048+1024}')
        a(f'buffer_store_dwordx4 {v(T+16,4)}, v4, s[28:31], s60 offen')
        a(f'buffer_store_dwordx4 {v(T+20,4)}, v4, s[28:31], s60 offen offset:512')
        T += 24
    st.mark(10)
    if stamp: a('s_waitcnt vmcnt(0)')
    st.mark(11)
    st.flush(40, 28, WS_USED)
    a('s_endpgm')

    a.label(name + '_loader')
    a('s_sub_u32 s50, s40, 4')
    a('v_lshrrev_b32 v2, 3, v1')
    a('v_and_b32 v3, 7, v1')
    a('v_lshrrev_b32 v4, 1, v2')
    a('v_xor_b32 v5, v3, v4')
    a('s_lshl_b32 s52, s41, 7')
    a('s_lshl_b32 s53, s50, 5')
    a('s_add_u32 s52, s52, s53')
    a('v_add_u32 v6, s52, v2')
    a('v_lshlrev_b32 v6, 10, v6')
    a('v_lshl_add_u32 v8, v5, 4, v6')
    a('v_add_u32 v9, 0x2000, v8')
    a('v_xor_b32 v9, 64, v9')
    a('v_add_u32 v10, 0x4000, v8')
    a('v_add_u32 v11, 0x4000, v9')
    a('v_and_b32 v5, 1, v4')
    a('v_lshlrev_b32 v5, 2, v5')
    a('v_xor_b32 v5, v3, v5')
    a('s_lshl_b32 s53, s50, 4')
    a('v_add_u32 v6, s53, v2')
    a('v_mul_u32_u24 v6, 3072, v6')
    a('v_lshl_add_u32 v6, v5, 4, v6')
    a('s_lshl_b32 s53, s43, 7')
    a('v_add_u32 v12, s53, v6')
    for g in range(3):
        for u in range(2):
            if (g,u) != (0,0):
                a(f'v_add_u32 v{12+2*g+u}, {g*1024+u*8*3072}, v12')
    a('s_lshl_b32 s54, s50, 12')
    a('s_lshl_b32 s55, s50, 11')
    a(f's_add_u32 s55, s55, {WREG}')
    def stage(s_):
        slot = s_ % NSLOT
        a(f's_mov_b32 s56, {s_*128}')
        a(f's_mov_b32 s57, {s_*196608}')
        for qq in range(4):
            a(f's_add_u32 m0, s54, {slot*16384+qq*1024}')
            a('s_nop 0')
            a(f'buffer_load_dwordx4 v{8+qq}, s[20:23], s56 offen lds')
        for g in range(3):
            for u in range(2):
                a(f's_add_u32 m0, s55, {slot*24576+g*8192+u*1024}')
                a('s_nop 0')
                a(f'buffer_load_dwordx4 v{12+2*g+u}, s[24:27], s57 offen lds')
    st.mark(1)
    for s_ in range(4): stage(s_)
    st.mark(2)
    a('s_waitcnt vmcnt(30)')
    st.mark(3)
    a('s_barrier')
    for s_ in range(1, 5):
        a('s_waitcnt vmcnt(20)')
        st.mark(3+s_)
        a('s_barrier')
        stage(s_+3)
    st.mark(8)
    a('s_lshl_b32 s58, s2, 2')
    a('s_add_u32 s58, s58, s50')
    a('s_lshr_b32 s59, s58, 9')
    a('s_cmp_eq_u32 s59, 0')
    a('s_cselect_b32 s60, s8, s14')
    a('s_cselect_b32 s61, s9, s15')
    srd(a, 32, 60, 512*1024)
    a('s_bfe_u32 s59, s58, 0x50004')
    a('s_and_b32 s62, s58, 15')
    a('v_lshrrev_b32 v20, 5, v1')
    a('v_and_b32 v21, 31, v1')
    a('s_lshl_b32 s59, s59, 14')
    a('s_lshl_b32 s62, s62, 6')
    a('s_add_u32 s59, s59, s62')
    a('v_lshlrev_b32 v20, 12, v20')
    a('v_lshl_add_u32 v20, v21, 1, v20')
    a('v_add_u32 v20, s59, v20')
    a('v_add_u32 v21, 0x2000, v20')
    for j in range(8):
        a(f'buffer_load_ushort v{24+j}, v{20+(j>>2)}, s[32:35], 0 offen offset:{(j&3)*1024}')
    E = 8
    srd(a, 36, 16, 1024)
    a('s_lshl_b32 s59, s41, 7')
    a('s_lshl_b32 s62, s46, 3')
    a('s_add_u32 s59, s59, s62')
    a('v_add_u32 v22, s59, v2')
    a('v_lshlrev_b32 v23, 7, v3')
    a('v_lshl_add_u32 v32, v22, 10, v23')
    a('s_cmp_lg_u32 s50, 0')
    a(f's_cbranch_scc1 {name}_nogate')
    for j in range(8):
        a(f'buffer_load_dwordx4 {v(40+4*j,4)}, v32, s[20:23], 0 offen offset:{16*j}')
    for j in range(8):
        a(f'buffer_load_dwordx4 {v(72+4*j,4)}, v23, s[36:39], 0 offen offset:{16*j}')
    for tgt, extra in ((5,20),(6,10),(7,0)):
        a(f's_waitcnt vmcnt({extra+24})')
        a('s_barrier')
    a('s_waitcnt vmcnt(0)')
    for r in range(4): a(f'v_mov_b32 v{33+r}, 0')
    for j in range(32):
        a(f'v_dot2_f32_bf16 v{33+(j&3)}, v{40+j}, v{72+j}, v{33+(j&3)}')
    a('s_nop 2')
    a('v_add_f32 v33, v33, v34')
    a('v_add_f32 v35, v35, v36')
    a('s_nop 0')
    a('v_add_f32 v33, v33, v35')
    a('s_nop 1')
    a('v_add_f32_dpp v33, v33, v33 quad_perm:[1,0,3,2] row_mask:0xf bank_mask:0xf')
    a('s_nop 1')
    a('v_add_f32_dpp v33, v33, v33 quad_perm:[2,3,0,1] row_mask:0xf bank_mask:0xf')
    a('s_nop 1')
    a('v_add_f32_dpp v33, v33, v33 row_half_mirror row_mask:0xf bank_mask:0xf')
    a('v_cvt_pk_bf16_f32 v33, v33, v33')
    a('v_lshlrev_b32 v33, 16, v33')
    a('v_mul_f32 v33, 0xbfb8aa3b, v33')
    a('v_exp_f32 v33, v33')
    a('s_nop 0')
    a('v_add_f32 v33, 1.0, v33')
    a('v_rcp_f32 v33, v33')
    a('s_nop 0')
    a('v_cvt_pk_bf16_f32 v33, v33, v33')
    a('v_lshlrev_b32 v33, 16, v33')
    a('v_lshlrev_b32 v22, 2, v22')
    a(f's_mov_b32 s59, {G_OFF}')
    a('v_cmp_eq_u32 vcc, 0, v3')
    a('s_and_saveexec_b64 s[62:63], vcc')
    a('buffer_store_dword v33, v22, s[28:31], s59 offen')
    a('s_mov_b64 exec, s[62:63]')
    a(f's_branch {name}_wo')
    a.label(name + '_nogate')
    for tgt, extra in ((5,20),(6,10),(7,0)):
        a(f's_waitcnt vmcnt({extra+8})')
        a('s_barrier')
    a('s_waitcnt vmcnt(0)')
    a.label(name + '_wo')
    for r in range(4):
        a(f'v_lshl_or_b32 v{24+r}, v{25+2*r}, 16, v{24+2*r}') if r == 0 else None
    a.lines.pop()
    for r in range(4):
        a(f'v_lshl_or_b32 v{36+r}, v{25+2*r}, 16, v{24+2*r}')
    a('s_lshl_b32 s58, s58, 10')
    a(f's_add_u32 s58, s58, {WOF_OFF}')
    a('v_lshlrev_b32 v2, 4, v1')
    a('buffer_store_dwordx4 v[36:39], v2, s[28:31], s58 offen')
    st.mark(9)
    st.flush(40, 28, WS_USED)
    a.label(end)
    a('s_endpgm')
    return a.text(), dict(name=name, vgpr=256 if stamp else 176, sgpr=96 if stamp else 72, lds=K1_LDS, block=512, grid=256)
```

```python
from asmlib import *
from layout import *
from k1 import srd

ONES_OFF = 131072
SCR_OFF  = 131072 + 8192
K2_LDS   = SCR_OFF + 18432

QB=164; QA=8; QAb=12
S=[16,32]; P=[48,56]; O=[64,80]
K=[96,100]; V=[104,112]
CF=120; CL=136
vKa=152; vVa=153; vVs=154; vG=155; vGA=156; vL16=157; vT=158

NEG = 0xf149f2ca

def exp_unit(a, s, p, mf, slots, pos=(0,6,11), pre=None):
    ci = 0; mi = 0
    for i in range(16):
        while mi < 3 and i == pos[mi]:
            if mf[mi] is not None: a(mf[mi])
            for x in slots[mi]: a(x)
            mi += 1
        a(f'v_exp_f32 v{s+i}, v{s+i}')
        if i % 2 == 1 and i >= 3:
            a(f'v_cvt_pk_bf16_f32 v{p+ci}, v{s+2*ci}, v{s+2*ci+1}'); ci += 1
    a('s_nop 0')
    while ci < 8:
        a(f'v_cvt_pk_bf16_f32 v{p+ci}, v{s+2*ci}, v{s+2*ci+1}'); ci += 1

def mm(d, A, B, C):
    c = C if isinstance(C, str) else v(C, 16)
    return f'v_mfma_f32_32x32x16_bf16 {v(d,16)}, {v(A,4)}, {v(B,4)}, {c}'

def gen_k2(name='attn_kernel', stamp=False, kidx=1):
    a = Asm()
    st = Stamps(a, stamp, kidx)
    WSZ = WS_USED + ((4<<20) if stamp else 0)
    a(f'.globl {name}')
    a('.p2align 8')
    a(f'.type {name},@function')
    a.label(name)
    end = name + '_end'
    a('s_cmp_ge_u32 s2, 256')
    a(f's_cbranch_scc1 {end}')
    st.start()
    a('s_load_dwordx2 s[18:19], s[0:1], 72')
    a('v_lshrrev_b32 v2, 6, v0')
    a('v_and_b32 v1, 63, v0')
    a('v_readfirstlane_b32 s40, v2')
    a('s_and_b32 s41, s2, 7')
    a('s_lshl_b32 s41, s41, 2')
    a('s_bfe_u32 s42, s2, 0x20003')
    a('s_add_u32 s41, s41, s42')
    a('s_lshr_b32 s42, s2, 5')
    a('s_lshl_b32 s43, s42, 3')
    a('s_add_u32 s43, s43, s40')
    a(f'v_lshlrev_b32 v{vL16}, 4, v1')
    a('s_waitcnt lgkmcnt(0)')
    srd(a, 28, 18, WSZ)
    a('s_add_u32 s44, s41, 32')
    a('s_lshl_b32 s44, s44, 6')
    a('s_add_u32 s45, s44, s43')
    a('s_lshl_b32 s45, s45, 10')
    a(f'buffer_load_dwordx4 {v(QB,4)}, v{vL16}, s[28:31], s45 offen')
    a('v_and_b32 v2, 31, v1')
    a('s_lshl_b32 s45, s43, 5')
    a('v_add_u32 v3, s45, v2')
    a('v_lshlrev_b32 v3, 2, v3')
    a(f's_mov_b32 s46, {G_OFF}')
    a(f'buffer_load_dword v{vG}, v3, s[28:31], s46 offen')
    a('s_lshl_b32 s45, s42, 3')
    a('s_lshl_b32 s46, s40, 1')
    a('s_add_u32 s45, s45, s46')
    a('s_sub_u32 s45, s45, 8')
    a('s_max_i32 s45, s45, 0')
    a('s_add_u32 s45, s45, s44')
    a('s_lshl_b32 s45, s45, 11')
    a(f's_add_u32 s45, s45, {KV_OFF}')
    a('s_lshl_b32 s47, s40, 12')
    a(f's_add_u32 s47, s47, {48*2048}')
    for i in range(4):
        a(f's_add_u32 m0, s47, {i*1024}')
        a(f's_add_u32 s46, s45, {i*1024}')
        a(f'buffer_load_dwordx4 v{vL16}, s[28:31], s46 offen lds')
    a('s_and_b32 s48, s40, 3')
    a('s_lshr_b32 s49, s40, 2')
    a('s_lshl_b32 s50, s41, 6')
    a('s_lshl_b32 s45, s42, 3')
    a('s_lshl_b32 s46, s48, 1')
    a('s_add_u32 s51, s45, s46')
    a('s_add_u32 s45, s50, s51')
    a('s_lshl_b32 s45, s45, 10')
    a(f'buffer_load_dwordx4 {v(QA,4)}, v{vL16}, s[28:31], s45 offen')
    a(f'buffer_load_dwordx4 {v(QAb,4)}, v{vL16}, s[28:31], s45 offen offset:1024')
    a('s_add_u32 s52, s51, s49')
    a('s_lshl_b32 s45, s52, 5')
    a('v_add_u32 v3, s45, v2')
    a('v_lshlrev_b32 v3, 2, v3')
    a(f's_mov_b32 s46, {G_OFF}')
    a(f'buffer_load_dword v{vGA}, v3, s[28:31], s46 offen')
    a('s_lshl_b32 s53, s50, 11')
    a(f's_add_u32 s53, s53, {KV_OFF}')
    a('s_lshl_b32 s54, s40, 10')
    a('s_add_u32 s55, s53, s54')
    for i in range(12):
        a(f's_add_u32 m0, s54, {i*8192}')
        a(f's_add_u32 s46, s55, {i*8192}')
        a(f'buffer_load_dwordx4 v{vL16}, s[28:31], s46 offen lds')
    for r in range(4): a(f'v_mov_b32 v{vT+2+r}, 0x3f803f80')
    a('v_lshlrev_b32 v3, 4, v0')
    a(f'v_add_u32 v3, {ONES_OFF}, v3')
    a(f'ds_write_b128 v3, {v(vT+2,4)}')
    a('v_lshrrev_b32 v3, 5, v1')
    a(f'v_lshlrev_b32 v{vT}, 2, v3')
    a(f'v_sub_u32 v{vT}, v2, v{vT}')
    a(f'v_mov_b32 v{vT+1}, {NEG:#x}')
    for r in range(16):
        b = (r & 3) + 8*(r >> 2)
        a(f'v_cmp_gt_i32 vcc, {b}, v{vT}')
        a('s_nop 1')
        a(f'v_cndmask_b32_e64 v{CF+r}, v{vT+1}, 0, vcc')
        a(f'v_cndmask_b32_e64 v{CL+r}, 0, v{vT+1}, vcc')
    a('v_and_b32 v4, 15, v1')
    a('v_lshlrev_b32 v4, 4, v4')
    a('v_lshl_add_u32 v5, v3, 8, v4')
    a('v_add_u32 v5, 1024, v5')
    a('v_bfe_u32 v6, v1, 4, 1')
    a('v_cmp_eq_u32 vcc, 1, v6')
    a(f'v_add_u32 v4, {ONES_OFF}, v4')
    a('s_add_u32 s45, s40, 56')
    a('s_lshl_b32 s45, s45, 11')
    a('v_add_u32 v6, s45, v5')
    a(f'v_cndmask_b32 v{vVa}, v6, v4, vcc')
    a(f'v_mov_b32 v6, 2048')
    a(f'v_cndmask_b32_e64 v{vVs}, v6, 0, vcc')
    a('s_add_u32 s45, s40, 48')
    a('s_lshl_b32 s45, s45, 11')
    a(f'v_add_u32 v{vKa}, s45, v{vL16}')
    for r in range(16): a(f'v_mov_b32 v{O[0]+r}, 0')
    for r in range(8): a(f'v_mov_b32 v{P[1]+r}, 0')
    for r in range(8): a(f'v_mov_b32 v{V[1]+r}, 0')
    a('s_min_u32 s56, s43, 8')
    a('s_add_u32 s56, s56, 1')
    st.mark(1)
    a('s_waitcnt vmcnt(15) lgkmcnt(0)')
    a('s_barrier')
    st.mark(2)
    def kB(i): return f'ds_read_b128 {v(K[i&1],4)}, v{vKa} offset:{(8-i)*2048}'
    def vB(i, u): return f'ds_read_b128 {v(V[i&1]+4*u,4)}, v{vVa} offset:{u*512}'
    a(kB(0)); a(kB(1))
    a('s_waitcnt lgkmcnt(1)')
    a(mm(S[0], K[0], QB, CL))
    a('s_nop 7')
    a('s_nop 1')
    tails = [name+'_btail0', name+'_btail1']
    for i in range(8):
        a(f's_cmp_le_u32 s56, {i+1}')
        a(f's_cbranch_scc1 {tails[i&1]}')
        a('s_waitcnt lgkmcnt(0)')
        up = (i-1) & 1
        mf = [mm(S[(i+1)&1], K[(i+1)&1], QB, CF if i+1 == 8 else '0'),
              mm(O[0], V[up], P[up], O[0]), mm(O[0], V[up]+4, P[up]+4, O[0])]
        sl = [[vB(i,0), vB(i,1)] + ([kB(i+2)] if i+2 <= 8 else []), [], []]
        exp_unit(a, S[i&1], P[i&1], mf, sl)
        a(f'v_sub_u32 v{vVa}, v{vVa}, v{vVs}')
    a(f's_branch {tails[0]}')
    for par in (0,1):
        a.label(tails[par])
        up = par ^ 1
        a('s_waitcnt lgkmcnt(0)')
        a(vB(par,0)); a(vB(par,1))
        a('s_nop 7')
        mf = [None, mm(O[0], V[up], P[up], O[0]), mm(O[0], V[up]+4, P[up]+4, O[0])]
        exp_unit(a, S[par], P[par], mf, [[],[],[]])
        a('s_waitcnt lgkmcnt(0)')
        a(mm(O[0], V[par], P[par], O[0]))
        a(mm(O[0], V[par]+4, P[par]+4, O[0]))
        if par == 0: a(f's_branch {name}_bdone')
    a.label(name+'_bdone')
    a(f'v_sub_f32 v{vT}, 1.0, v{vG}')
    a(f'v_cvt_pk_bf16_f32 v{vT}, v{vT}, v{vT}')
    a(f'v_lshlrev_b32 v{vT}, 16, v{vT}')
    a('s_nop 7')
    a('s_nop 1')
    a(f'v_rcp_f32 v{vT+1}, v{O[0]+8}')
    a('s_nop 0')
    a(f'v_mul_f32 v{vT}, v{vT}, v{vT+1}')
    for r in range(8): a(f'v_mul_f32 v{O[0]+r}, v{O[0]+r}, v{vT}')
    for r in range(4): a(f'v_cvt_pk_bf16_f32 v{vT+2+r}, v{O[0]+2*r}, v{O[0]+2*r+1}')
    a('s_add_u32 s45, s43, 64')
    a('s_lshl_b32 s45, s45, 5')
    a('s_add_u32 s45, s45, s41')
    a('s_lshl_b32 s45, s45, 10')
    a(f's_add_u32 s45, s45, {OF_OFF}')
    a(f'buffer_store_dwordx4 {v(vT+2,4)}, v{vL16}, s[28:31], s45 offen')
    st.mark(3)
    a('s_barrier')
    for i in range(4):
        a(f's_add_u32 m0, s54, {98304+i*8192}')
        a(f's_add_u32 s46, s55, {98304+i*8192}')
        a(f'buffer_load_dwordx4 v{vL16}, s[28:31], s46 offen lds')
    a('s_lshl_b32 s45, s49, 16')
    a(f'v_add_u32 v{vKa}, s45, v{vL16}')
    a('v_add_u32 v6, s45, v5')
    a('v_bfe_u32 v7, v1, 4, 1')
    a('v_cmp_eq_u32 vcc, 1, v7')
    a('v_mov_b32 v7, 4096')
    a('s_nop 0')
    a(f'v_cndmask_b32 v{vVa}, v6, v4, vcc')
    a(f'v_cndmask_b32_e64 v{vVs}, v7, 0, vcc')
    for x in (0,1):
        for r in range(16): a(f'v_mov_b32 v{O[x]+r}, 0')
    for r in range(8): a(f'v_mov_b32 v{P[1]+r}, 0')
    for r in range(8): a(f'v_mov_b32 v{V[1]+r}, 0')
    a('s_waitcnt vmcnt(4)')
    a('s_barrier')
    st.mark(4)
    Q = [QA, QAb]
    def kA(t): return f'ds_read_b128 {v(K[t&1],4)}, v{vKa} offset:{t*2048}'
    def vA(t,u): return f'ds_read_b128 {v(V[t&1]+4*u,4)}, v{vVa} offset:{t*2048+u*512}'
    a(kA(0)); a(vA(0,0)); a(vA(0,1))
    a('s_waitcnt lgkmcnt(2)')
    a(mm(S[0], K[0], Q[0], '0'))
    a('s_nop 7')
    a('s_mov_b32 s57, 1')
    a('s_mov_b32 s58, 0')
    loop = name + '_aloop'
    a('.p2align 6')
    a.label(loop)
    for t in (0,1):
        tp = (t-1) & 1
        mf = [mm(S[1], K[t&1], Q[1], '0'), mm(O[1], V[tp], P[1], O[1]), mm(O[1], V[tp]+4, P[1]+4, O[1])]
        sl = [[kA(t+1)], ['s_sub_u32 s57, s57, 1'] if t == 1 else [], ['s_waitcnt lgkmcnt(0)']]
        exp_unit(a, S[0], P[0], mf, sl)
        mf = [mm(S[0], K[(t+1)&1], Q[0], '0'), mm(O[0], V[t&1], P[0], O[0]), mm(O[0], V[t&1]+4, P[0]+4, O[0])]
        sl = [[vA(t+1,0)], [vA(t+1,1)], []]
        exp_unit(a, S[1], P[1], mf, sl)
    a(f'v_add_u32 v{vKa}, 4096, v{vKa}')
    a(f'v_add_u32 v{vVa}, v{vVs}, v{vVa}')
    a(f's_cbranch_scc0 {loop}')
    a('s_cmp_lg_u32 s58, 0')
    a(f's_cbranch_scc1 {name}_adone')
    a('s_waitcnt vmcnt(0)')
    a('s_barrier')
    a('s_mov_b32 s57, 13')
    a('s_mov_b32 s58, 1')
    a(f's_branch {loop}')
    a.label(name + '_adone')
    st.mark(5)
    a(mm(O[1], V[1], P[1], O[1]))
    a(mm(O[1], V[1]+4, P[1]+4, O[1]))
    a('s_mul_i32 s45, s40, 2304')
    a(f's_add_u32 s45, s45, {SCR_OFF}')
    a(f'v_add_u32 v2, s45, v{vL16}')
    a('v_lshlrev_b32 v3, 2, v1')
    a('v_add_u32 v3, s45, v3')
    a('s_xor_b32 s46, s40, 4')
    a('s_mul_i32 s46, s46, 2304')
    a(f's_add_u32 s46, s46, {SCR_OFF}')
    a(f'v_add_u32 v6, s46, v{vL16}')
    a('v_lshlrev_b32 v7, 2, v1')
    a('v_add_u32 v7, s46, v7')
    a('s_cmp_eq_u32 s49, 0')
    a(f's_cbranch_scc1 {name}_cmb0')
    a(f'ds_write_b128 v2, {v(O[0],4)}')
    a(f'ds_write_b128 v2, {v(O[0]+4,4)} offset:1024')
    a(f'ds_write_b32 v3, v{O[0]+8} offset:2048')
    a('s_nop 7')
    for r in range(9): a(f'v_mov_b32 v{O[0]+r}, v{O[1]+r}')
    a(f's_branch {name}_cmb1')
    a.label(name + '_cmb0')
    a('s_nop 7')
    a('s_nop 3')
    a(f'ds_write_b128 v2, {v(O[1],4)}')
    a(f'ds_write_b128 v2, {v(O[1]+4,4)} offset:1024')
    a(f'ds_write_b32 v3, v{O[1]+8} offset:2048')
    a.label(name + '_cmb1')
    a('s_waitcnt lgkmcnt(0)')
    a('s_barrier')
    a(f'ds_read_b128 {v(S[0],4)}, v6')
    a(f'ds_read_b128 {v(S[0]+4,4)}, v6 offset:1024')
    a(f'ds_read_b32 v{S[0]+8}, v7 offset:2048')
    a('s_waitcnt lgkmcnt(0)')
    for r in range(9): a(f'v_add_f32 v{O[0]+r}, v{O[0]+r}, v{S[0]+r}')
    a(f'v_rcp_f32 v{vT+1}, v{O[0]+8}')
    a('s_nop 0')
    a(f'v_mul_f32 v{vT}, v{vGA}, v{vT+1}')
    for r in range(8): a(f'v_mul_f32 v{O[0]+r}, v{O[0]+r}, v{vT}')
    for r in range(4): a(f'v_cvt_pk_bf16_f32 v{vT+2+r}, v{O[0]+2*r}, v{O[0]+2*r+1}')
    a('s_lshl_b32 s45, s52, 5')
    a('s_add_u32 s45, s45, s41')
    a('s_lshl_b32 s45, s45, 10')
    a(f's_add_u32 s45, s45, {OF_OFF}')
    a(f'buffer_store_dwordx4 {v(vT+2,4)}, v{vL16}, s[28:31], s45 offen')
    st.mark(6)
    if stamp: a('s_waitcnt vmcnt(0)')
    st.mark(7)
    st.flush(40, 28, WS_USED)
    a.label(end)
    a('s_endpgm')
    return a.text(), dict(name=name, vgpr=256 if stamp else 168, sgpr=96 if stamp else 72, lds=K2_LDS, block=512, grid=256)
```

```python
from asmlib import *
from layout import *
from k1 import srd

def gen_k3(name='oproj_kernel', stamp=False, kidx=2):
    a = Asm()
    st = Stamps(a, stamp, kidx)
    WSZ = WS_USED + ((4<<20) if stamp else 0)
    a(f'.globl {name}')
    a('.p2align 8')
    a(f'.type {name},@function')
    a.label(name)
    end = name + '_end'
    a('s_cmp_ge_u32 s2, 256')
    a(f's_cbranch_scc1 {end}')
    st.start()
    a('s_load_dwordx2 s[16:17], s[0:1], 56')
    a('s_load_dwordx2 s[18:19], s[0:1], 72')
    a('v_lshrrev_b32 v2, 6, v0')
    a('v_and_b32 v1, 63, v0')
    a('v_readfirstlane_b32 s40, v2')
    a('s_and_b32 s41, s2, 7')
    a('s_lshl_b32 s41, s41, 2')
    a('s_bfe_u32 s42, s2, 0x20003')
    a('s_add_u32 s41, s41, s42')
    a('s_lshr_b32 s42, s2, 5')
    a('s_and_b32 s43, s40, 1')
    a('s_bfe_u32 s44, s40, 0x10001')
    a('s_lshr_b32 s45, s40, 2')
    a('v_lshlrev_b32 v2, 4, v1')
    a('s_waitcnt lgkmcnt(0)')
    srd(a, 28, 18, WSZ)
    srd(a, 24, 16, 2048*1024)
    a('s_lshl_b32 s46, s45, 6')
    a('s_lshl_b32 s47, s41, 1')
    a('s_add_u32 s46, s46, s47')
    a('s_add_u32 s46, s46, s43')
    a('s_lshl_b32 s46, s46, 15')
    a(f's_add_u32 s46, s46, {OF_OFF}')
    a('s_lshl_b32 s47, s45, 9')
    a('s_lshl_b32 s48, s42, 1')
    a('s_add_u32 s47, s47, s48')
    a('s_add_u32 s47, s47, s44')
    a('s_lshl_b32 s47, s47, 10')
    a(f's_add_u32 s47, s47, {WOF_OFF}')
    BUF = [16, 80]; ACC = 144
    def chunk(c):
        b = BUF[c & 1]
        for i in range(8):
            h = 8*c + i
            a(f's_add_u32 s50, s46, {h*1024}')
            a(f'buffer_load_dwordx4 {v(b+8*i,4)}, v2, s[28:31], s50 offen')
            a(f's_add_u32 s51, s47, {h*16384}')
            a(f'buffer_load_dwordx4 {v(b+8*i+4,4)}, v2, s[28:31], s51 offen')
    chunk(0); chunk(1)
    st.mark(1)
    for c in range(4):
        a(f's_waitcnt vmcnt({16 if c < 3 else 0})')
        b = BUF[c & 1]
        for i in range(8):
            cc = '0' if (c == 0 and i == 0) else v(ACC,16)
            a(f'v_mfma_f32_32x32x16_bf16 {v(ACC,16)}, {v(b+8*i+4,4)}, {v(b+8*i,4)}, {cc}')
        if c + 2 < 4: chunk(c+2)
    st.mark(2)
    a('s_and_b32 s50, s40, 3')
    a('s_lshl_b32 s50, s50, 12')
    a('v_add_u32 v3, s50, v2')
    a('s_nop 7')
    a('s_nop 3')
    a('s_cmp_eq_u32 s45, 0')
    a(f's_cbranch_scc1 {name}_a')
    for i in range(4): a(f'ds_write_b128 v3, {v(ACC+4*i,4)} offset:{i*1024}')
    a('s_waitcnt lgkmcnt(0)')
    a('s_barrier')
    a('s_endpgm')
    a.label(name + '_a')
    a('s_barrier')
    for i in range(4): a(f'ds_read_b128 {v(16+4*i,4)}, v3 offset:{i*1024}')
    a('s_waitcnt lgkmcnt(0)')
    for r in range(16): a(f'v_add_f32 v{ACC+r}, v{ACC+r}, v{16+r}')
    for r in range(8): a(f'v_cvt_pk_bf16_f32 v{32+r}, v{ACC+2*r}, v{ACC+2*r+1}')
    a('s_nop 1')
    a('v_permlane32_swap_b32 v32, v34')
    a('v_permlane32_swap_b32 v33, v35')
    a('v_permlane32_swap_b32 v36, v38')
    a('v_permlane32_swap_b32 v37, v39')
    a('v_and_b32 v4, 31, v1')
    a('s_lshl_b32 s50, s41, 6')
    a('s_lshl_b32 s51, s43, 5')
    a('s_add_u32 s50, s50, s51')
    a('v_add_u32 v4, s50, v4')
    a('v_lshlrev_b32 v4, 10, v4')
    a('v_lshrrev_b32 v5, 5, v1')
    a('v_lshl_add_u32 v4, v5, 4, v4')
    a('s_lshl_b32 s50, s42, 7')
    a('s_lshl_b32 s51, s44, 6')
    a('s_add_u32 s50, s50, s51')
    a('buffer_store_dwordx4 v[32:35], v4, s[24:27], s50 offen')
    a('buffer_store_dwordx4 v[36:39], v4, s[24:27], s50 offen offset:32')
    st.mark(3)
    if stamp: a('s_waitcnt vmcnt(0)')
    st.mark(4)
    st.flush(40, 28, WS_USED)
    a.label(end)
    a('s_endpgm')
    return a.text(), dict(name=name, vgpr=256 if stamp else 160, sgpr=96 if stamp else 72, lds=16384, block=512, grid=256)
```

```python
QF_OFF  = 0
KV_OFF  = 4 << 20
WOF_OFF = 12 << 20
OF_OFF  = 13 << 20
G_OFF   = 17 << 20
FLAG_OFF= (17 << 20) + (256 << 10)
FX_OFF  = FLAG_OFF
FA_OFF  = FLAG_OFF + 0x1000
FB_OFF  = FLAG_OFF + 0x4000
FOA_OFF = FLAG_OFF + 0x8000
FOB_OFF = FLAG_OFF + 0xC000
ONESG_OFF = (17 << 20) + (512 << 10)
WS_USED = 18 << 20
C_SCALE = 0.25 * 1.4426950408889634
import struct
def f2u(x): return struct.unpack('<I', struct.pack('<f', x))[0]
```

```python
import sys
sys.path.insert(0,'gen')
from fused import *
from build import build
KN='gated_mix__softmax_full_mha__sliding_block__prompt_kernel'
def buildf(out, **kw):
    t,m=gen_fused(KN, **kw)
    p=check_hazards(t)
    if p: print('HAZARDS'); print('\n'.join(p[:60]))
    hdr = '; single fused kernel; generated by my own generator scripts (gen/fused.py)\n'
    hdr += f"; @launch grid=({m['grid']},1,1) block=({m['block']},1,1) lds={m['lds']}\n"
    txt = hdr + '.amdgcn_target "amdgcn-amd-amdhsa--gfx950"\n.text\n' + t
    txt += f'''.section .rodata,"a"
.p2align 6
.amdhsa_kernel {m['name']}
  .amdhsa_next_free_vgpr {m['vgpr']}
  .amdhsa_next_free_sgpr {m['sgpr']}
  .amdhsa_accum_offset {(m['vgpr']+3)//4*4}
  .amdhsa_group_segment_fixed_size 0
  .amdhsa_kernarg_size 80
  .amdhsa_user_sgpr_count 2
  .amdhsa_user_sgpr_kernarg_segment_ptr 1
  .amdhsa_system_sgpr_workgroup_id_x 1
  .amdhsa_float_denorm_mode_32 3
.end_amdhsa_kernel
'''
    open(out,'w').write(txt)
if __name__=='__main__':
    out=sys.argv[1]
    kw={}
    for x in sys.argv[2:]:
        if x=='stamp': kw['stamp']=True
        elif x.startswith('upto='): kw['upto']=x[5:]
    buildf(out, **kw)
```

```python
from asmlib import *
from layout import *

def srd(a, dst, base, size):
    a(f's_mov_b32 s{dst}, s{base}')
    a(f's_and_b32 s{dst+1}, s{base+1}, 0xffff')
    a(f's_mov_b32 s{dst+2}, {size}')
    a(f's_mov_b32 s{dst+3}, 0x20000')

RING = [0, 28672, 57344, 86016, 114688]
def slotaddr(s): return RING[s % 5]
GWL  = 143360
QSA  = 145408
QSB  = 153600
GST  = 161792
WOA_L = 0; WOB_L = 65536; SCRC = 65536; RSCR = 0
LDS_TOTAL = 163840

sX=20; sWA=24; sWS=28; sWB=32; sT=36
sWAVE=40; sHP=41; sTB=42; sH=43; sE=44; sK0=67
sNON=64
NEG = 0xf149f2ca
SPIN_MAX = 1 << 18
WS = f's[{sWS}:{sWS+3}]'

vKst=166; vVst=167; sST=70; vG=155; vRe=153; vVV=152; vL16=157; vFL=168; vNON=172; vZ=174; vL8=175; vVo=156; vWo=154; vT=158

def flag_store(a, soff):
    a('s_mov_b64 exec, 1')
    a(f'buffer_store_dwordx2 {v(vNON,2)}, v{vZ}, {WS}, s{soff} offen sc1')
    a('s_mov_b64 exec, -1')

def emit_poll(a, name, voff, soff, first_issued=True, tmp=45):
    top = a.newlabel(name+'_poll'); ok = a.newlabel(name+'_ok')
    a(f's_mov_b32 s{tmp}, {SPIN_MAX}')
    if not first_issued:
        a(f's_branch {top}_ld')
    a.label(top)
    a(f'v_cmp_eq_u32 s[46:47], s{sNON}, v{vFL}')
    a(f'v_cmp_eq_u32 vcc, s{sNON+1}, v{vFL+1}')
    a('s_nop 1')
    a('s_and_b64 s[46:47], s[46:47], vcc')
    a('s_cmp_eq_u64 s[46:47], exec')
    a(f's_cbranch_scc1 {ok}')
    a(f's_sub_u32 s{tmp}, s{tmp}, 1')
    a(f's_cbranch_scc1 {ok}')
    a('s_sleep 1')
    a.label(top + '_ld')
    a(f'buffer_load_dwordx2 {v(vFL,2)}, v{voff}, {WS}, s{soff} offen sc1')
    a('s_waitcnt vmcnt(0)')
    a(f's_branch {top}')
    a.label(ok)

def mm(d, A, B, C):
    c = C if isinstance(C, str) else v(C, 16)
    return f'v_mfma_f32_32x32x16_bf16 {v(d,16)}, {v(A,4)}, {v(B,4)}, {c}'

def unit(a, s, p, mf, slots, pos=(0,6,11)):
    ci = 0; mi = 0
    for i in range(16):
        while mi < 3 and i == pos[mi]:
            if mf[mi] is not None: a(mf[mi])
            for x in slots[mi]:
                if isinstance(x, tuple): emit_poll(a, 'fbp', vL8, 59, tmp=48)
                else: a(x)
            mi += 1
        a(f'v_exp_f32 v{s+i}, v{s+i}')
        if i % 2 == 1 and i >= 3:
            a(f'v_cvt_pk_bf16_f32 v{p+ci}, v{s+2*ci}, v{s+2*ci+1}'); ci += 1
    a(f'v_cvt_pk_bf16_f32 v{p+7}, v{s+14}, v{s+15}')

VMASK = '0x0000ffff0000ffff'

def gen_v3(name, stamp=False, upto='all', opt=None):
    opt = opt or {}
    a = Asm()
    st = Stamps(a, stamp, 0)
    if opt.get('dbgwg') is not None: st.dbg = (opt['dbgwg'], opt.get('dbgwave', 4))
    WSZ = WS_USED + ((4<<20) if stamp else 0)
    a(f'.globl {name}')
    a('.p2align 8')
    a(f'.type {name},@function')
    a.label(name)
    end = name + '_end'
    a('s_cmp_ge_u32 s2, 256')
    a(f's_cbranch_scc1 {end}')
    st.start()
    a('s_load_dwordx4 s[4:7], s[0:1], 0')
    a('s_load_dwordx2 s[10:11], s[0:1], 72')
    a('s_load_dwordx4 s[12:15], s[0:1], 32')
    a('s_load_dwordx4 s[16:19], s[0:1], 48')
    a('s_load_dwordx2 s[8:9], s[0:1], 16')
    a('v_lshrrev_b32 v2, 6, v0')
    a('v_and_b32 v1, 63, v0')
    a(f'v_readfirstlane_b32 s{sWAVE}, v2')
    a('s_and_b32 s45, s2, 7')
    a('s_lshr_b32 s46, s2, 3')
    a('s_and_b32 s47, s45, 1')
    a('s_lshl_b32 s47, s47, 3')
    a('s_and_b32 s48, s46, 7')
    a(f's_add_u32 s{sTB}, s47, s48')
    a('s_lshr_b32 s47, s45, 1')
    a('s_lshl_b32 s47, s47, 2')
    a('s_lshr_b32 s48, s46, 3')
    a(f's_add_u32 s{sHP}, s47, s48')
    a(f's_lshr_b32 s{sE}, s{sWAVE}, 2')
    a(f's_lshl_b32 s{sH}, s{sHP}, 1')
    a(f's_add_u32 s{sH}, s{sH}, s{sE}')
    a(f's_and_b32 s45, s{sHP}, 3')
    a('s_lshl_b32 s45, s45, 1')
    a(f's_add_u32 s45, s45, s{sTB}')
    a(f's_and_b32 s{sK0}, s45, {7 if opt.get("rot", 1) else 0}')
    a('s_waitcnt lgkmcnt(0)')
    srd(a, sX, 4, 2048*1024)
    srd(a, sWA, 6, 512*3072)
    a(f's_cmp_ge_u32 s{sWAVE}, 4')
    a(f's_cbranch_scc1 {name}_loader')

    def common_late():
        srd(a, sWS, 10, WSZ)
        a(f's_add_u32 s70, s10, {FX_OFF}')
        a('s_addc_u32 s71, s11, 0')
        a(f's_load_dwordx2 s[{sNON}:{sNON+1}], s[70:71], 0')
        a('s_waitcnt lgkmcnt(0)')
        a(f's_add_u32 s{sNON}, s{sNON}, 1')
        a(f's_addc_u32 s{sNON+1}, s{sNON+1}, 0')
        a(f'v_mov_b32 v{vNON}, s{sNON}')
        a(f'v_mov_b32 v{vNON+1}, s{sNON+1}')
        a(f'v_mov_b32 v{vZ}, 0')
        a(f'v_lshlrev_b32 v{vL16}, 4, v1')
        a(f'v_lshlrev_b32 v{vL8}, 3, v1')

    pXA = [[8,9,10,11],[13,14,15,16],[18,19,20,21]]; pW = [12,17,22]; pGW = 23
    FR = 24
    aQ, aK, aV, aG = 104, 120, 136, 176
    bQ, bK, bV = 192, 208, 224
    if opt.get('prefetch', 0):
        srd(a, sWB, 12, 512*3072)
        a(f's_cmp_eq_u32 s{sWAVE}, 0')
        a(f's_cbranch_scc1 {name}_pfw')
        a(f's_and_b32 s45, s{sHP}, 3')
        a('s_lshl_b32 s45, s45, 5')
        a(f's_lshl_b32 s46, s{sTB}, 7')
        a('s_add_u32 s45, s45, s46')
        a('v_and_b32 v4, 31, v1')
        a('v_add_u32 v4, s45, v4')
        a('v_lshlrev_b32 v4, 10, v4')
        a('v_lshrrev_b32 v5, 5, v1')
        a('v_lshl_add_u32 v4, v5, 7, v4')
        a(f's_lshl_b32 s45, s{sWAVE}, 8')
        a(f'buffer_load_dword v240, v4, s[{sX}:{sX+3}], s45 offen')
        a(f's_branch {name}_pfd')
        a.label(name + '_pfw')
        a(f's_and_b32 s45, s{sHP}, 3')
        a('s_lshl_b32 s45, s45, 3')
        a(f's_and_b32 s46, s{sTB}, 7')
        a('s_add_u32 s45, s45, s46')
        a('s_mul_i32 s45, s45, 49152')
        a(f's_and_b32 s46, s{sHP}, 12')
        a('s_lshl_b32 s46, s46, 6')
        a('s_add_u32 s45, s45, s46')
        a('v_lshrrev_b32 v4, 2, v1')
        a('v_mul_u32_u24 v4, 3072, v4')
        a('v_bfe_u32 v5, v1, 1, 1')
        a('v_lshl_add_u32 v4, v5, 10, v4')
        a('v_and_b32 v5, 1, v1')
        a('v_lshl_add_u32 v4, v5, 7, v4')
        a('v_bfe_u32 v6, v1, 1, 4')
        a('v_mul_u32_u24 v6, 3072, v6')
        a('v_lshl_add_u32 v6, v5, 7, v6')
        a('v_add_u32 v6, 2048, v6')
        a(f'buffer_load_dword v240, v4, s[{sWA}:{sWA+3}], s45 offen')
        a(f'buffer_load_dword v241, v6, s[{sWA}:{sWA+3}], s45 offen')
        a(f'buffer_load_dword v242, v4, s[{sWB}:{sWB+3}], s45 offen')
        a(f'buffer_load_dword v243, v6, s[{sWB}:{sWB+3}], s45 offen')
        a.label(name + '_pfd')
    common_late()
    a(f's_cmp_lg_u32 s{sWAVE}, 0')
    a(f's_cbranch_scc1 {name}_noones')
    for r in range(4): a(f'v_mov_b32 v{240+r}, 0x3f803f80')
    a('s_lshl_b32 s45, s2, 10')
    a(f's_add_u32 s45, s45, {ONESG_OFF}')
    a(f'buffer_store_dwordx4 v[240:243], v{vL16}, {WS}, s45 offen')
    a.label(name + '_noones')
    a('v_and_b32 v2, 31, v1')
    a('v_lshrrev_b32 v3, 5, v1')
    a(f's_lshl_b32 s45, s{sWAVE}, 5')
    a('v_add_u32 v4, s45, v2')
    a('v_bfe_u32 v5, v4, 1, 3')
    a('v_xor_b32 v5, v5, v3')
    a('v_lshlrev_b32 v5, 4, v5')
    a('v_lshl_add_u32 v8, v4, 7, v5')
    a('v_xor_b32 v9, 32, v8')
    a('v_xor_b32 v10, 64, v8')
    a('v_xor_b32 v11, 0x60, v8')
    a('v_bfe_u32 v4, v1, 2, 2')
    a('v_lshl_add_u32 v4, v3, 3, v4')
    a('v_lshlrev_b32 v4, 6, v4')
    a('v_bfe_u32 v5, v1, 4, 1')
    a('v_lshl_add_u32 v4, v5, 5, v4')
    a('v_and_b32 v5, 3, v1')
    a('v_lshl_add_u32 v4, v5, 3, v4')
    a('v_add_u32 v12, 16384, v4')
    for b in (1,2):
        off = RING[2*b]
        for kk in range(4): a(f'v_add_u32 v{pXA[b][kk]}, {off}, v{pXA[0][kk]}')
        a(f'v_add_u32 v{pW[b]}, {off}, v{pW[0]}')
    a(f'v_lshlrev_b32 v{pGW}, 4, v3')
    a(f's_lshl_b32 s45, s{sK0}, 7')
    a(f's_add_u32 s45, s45, {GWL}')
    a(f'v_add_u32 v{pGW}, s45, v{pGW}')
    q = DSQ(a)
    def fset(n): return FR + 20*(n & 3)
    def reads(n):
        s_, kk = divmod(n, 4)
        sa = slotaddr(s_)
        b = RING.index(sa) // 2
        rel = sa - RING[2*b]
        f = fset(n)
        out = [(f'ds_read_b128 {v(f,4)}, v{pXA[b][kk]} offset:{rel}', (n,'x'))]
        for g in range(3):
            o = rel + g*4096 + kk*1024
            out.append((f'ds_read_b64_tr_b16 {v(f+4+4*g,2)}, v{pW[b]} offset:{o}', (n,f'w{g}')))
            out.append((f'ds_read_b64_tr_b16 {v(f+6+4*g,2)}, v{pW[b]} offset:{o+256}', (n,f'w{g}')))
        if n < 32:
            out.append((f'ds_read_b128 {v(f+16,4)}, v{pGW} offset:{n*32}', (n,'g')))
        return out
    def pm(n, g):
        f = fset(n); x = f
        accs = (aQ,aK,aV,aG) if n < 32 else (bQ,bK,bV)
        d = accs[g]; first = n in (0, 32)
        c = '0' if first else d
        w = f+4+4*g
        if g == 2: return mm(d, x, w, c)
        return mm(d, w, x, c)
    def p_epilogue(br, a=a, q=q):
        Qa, Ka, Va = (aQ,aK,aV) if br == 0 else (bQ,bK,bV)
        T = 240
        a(f's_lshl_b32 s45, s{sHP}, 1')
        a(f's_add_u32 s45, s45, {br*32}')
        a('s_lshl_b32 s45, s45, 6')
        a(f's_lshl_b32 s46, s{sTB}, 2')
        a('s_add_u32 s45, s45, s46')
        a(f's_add_u32 s45, s45, s{sWAVE}')
        a('s_lshl_b32 s47, s45, 11')
        a(f's_add_u32 s47, s47, {KV_OFF}')
        a(f's_mov_b32 s48, {f2u(C_SCALE):#x}')
        a(f's_mov_b32 s49, {f2u(C_SCALE):#x}')
        TK = T if br == 0 else 8
        TV = T+8 if br == 0 else 16
        for i in range(8): a(f'v_cvt_pk_bf16_f32 v{TK+i}, v{Ka+2*i}, v{Ka+2*i+1}')
        if br == 0:
            a(f's_add_u32 s50, s47, 131072')
            a(f'buffer_store_dwordx4 {v(TK,4)}, v{vL16}, {WS}, s47 offen sc1')
            a(f'buffer_store_dwordx4 {v(TK+4,4)}, v{vL16}, {WS}, s50 offen sc1')
        a('v_bfe_u32 v4, v1, 4, 1')
        a('v_lshlrev_b32 v4, 17, v4')
        a('v_lshrrev_b32 v5, 5, v1')
        a('v_lshl_add_u32 v4, v5, 8, v4')
        a('v_and_b32 v5, 15, v1')
        a('v_lshl_add_u32 v4, v5, 4, v4')
        for i in range(8): a(f'v_cvt_pk_bf16_f32 v{TV+i}, v{Va+2*i}, v{Va+2*i+1}')
        if br == 0:
            a(f'buffer_store_dwordx4 {v(TV,4)}, v4, {WS}, s47 offen offset:1024 sc1')
            a(f'buffer_store_dwordx4 {v(TV+4,4)}, v4, {WS}, s47 offen offset:1536 sc1')
        else:
            a(f'v_mov_b32 v{vVst}, v4')
            a(f'v_mov_b32 v{vKst}, v{vL16}')
            a(f's_mov_b32 s{sST}, s47')
            a(f's_add_u32 s{sST+1}, s47, 131072')
        for i in range(8): a(f'v_pk_mul_f32 {v(Qa+2*i,2)}, {v(Qa+2*i,2)}, s[48:49]')
        for i in range(8): a(f'v_cvt_pk_bf16_f32 v{Ka+i}, v{Qa+2*i}, v{Qa+2*i+1}')
        a(f's_lshl_b32 s45, s{sWAVE}, 10')
        a(f's_add_u32 s45, s45, {QSA if br == 0 else QSB}')
        a(f'v_add_u32 v4, s45, v{vL16}')
        q.issue(f'ds_write_b128 v4, {v(Ka,4)}', ('qs',br,0))
        q.issue(f'ds_write_b128 v4, {v(Ka+4,4)} offset:4096', ('qs',br,1))
        if br == 0:
            g = Va
            a(f'v_cvt_pk_bf16_f32 v{g}, v{aG}, v{aG}')
            a(f'v_lshlrev_b32 v{g}, 16, v{g}')
            a(f'v_mul_f32 v{g}, 0xbfb8aa3b, v{g}')
            a(f'v_exp_f32 v{g}, v{g}')
            a('s_nop 0')
            a(f'v_add_f32 v{g}, 1.0, v{g}')
            a(f'v_rcp_f32 v{g}, v{g}')
            a('s_nop 0')
            a(f'v_cvt_pk_bf16_f32 v{g}, v{g}, v{g}')
            a(f'v_lshlrev_b32 v{g}, 16, v{g}')
            a(f's_lshl_b32 s45, s{sWAVE}, 7')
            a(f's_add_u32 s45, s45, {GST}')
            a('v_and_b32 v5, 31, v1')
            a('v_lshlrev_b32 v5, 2, v5')
            a('v_add_u32 v5, s45, v5')
            q.issue(f'ds_write_b32 v5, v{g}', ('gs',))
    def pflag(off):
        a(f's_lshl_b32 s45, s{sHP}, 4')
        a(f's_add_u32 s45, s45, s{sTB}')
        a('s_lshl_b32 s45, s45, 2')
        a(f's_add_u32 s45, s45, s{sWAVE}')
        a('s_lshl_b32 s45, s45, 3')
        a(f's_add_u32 s45, s45, {off}')
        flag_store(a, 45)
    a('s_barrier')
    st.mark(1)
    for n in (0, 1):
        for line, tag in reads(n): q.issue(line, tag)
    NST = 64
    FA_STEP = opt.get('fa_step', 50)
    EPI_PER_STEP = opt.get('epi', 10)
    epi = []
    class Rec:
        def __call__(self, line): epi.append(('i', line))
    class RecQ:
        def issue(self, line, tag): epi.append(('q', line, tag))
    p_epilogue(0, Rec(), RecQ())
    for n in range(NST):
        s_, kk = divmod(n, 4)
        if kk == 2 and s_ < 15:
            q.waitall()
            a('s_barrier')
            if opt.get('pdbg'):
                if s_ >= 7: st.mark(s_ - 5)
            elif s_ in (3, 7, 11): st.mark({3:2, 7:3, 11:4}[s_])
        rd = reads(n+2) if n+2 < NST else []
        ng = 4 if n < 32 else 3
        ri = 0
        q.wait([(n,t) for t in ('x','w0','w1','w2','g')])
        for g in range(ng):
            a(pm(n, g))
            k = 3 if g < 2 else 2
            for _ in range(k):
                if ri < len(rd):
                    q.issue(*rd[ri]); ri += 1
        while ri < len(rd):
            q.issue(*rd[ri]); ri += 1
        if n >= 33 and epi:
            k = EPI_PER_STEP
            while k > 0 and epi:
                x = epi.pop(0)
                if x[0] == 'i':
                    a(x[1])
                    if x[1].startswith('v_') or x[1].startswith('buffer'): k -= 1
                else: q.issue(x[1], x[2])
            if not epi and opt.get('pdbg'): st.mark(11)
        if n == FA_STEP:
            if opt.get('pdbg'): st.mark(12)
            a('s_waitcnt vmcnt(0)')
            if opt.get('pdbg'): st.mark(13)
            pflag(FA_OFF)
    if opt.get('pdbg'):
        st.flush(sWAVE, sWS, WS_USED); st.on = False
    st.mark(5)
    a('s_barrier')
    from v3_attn import emit_first
    class G0: pass
    g0 = G0(); g0.a = a; g0.st = st; g0.name = name + '_c'; g0.opt = opt
    emit_first(g0)
    p_epilogue(1)
    a(f's_branch {name}_attn')

    a.label(name + '_loader')
    a(f's_sub_u32 s50, s{sWAVE}, 4')
    a('v_lshrrev_b32 v2, 3, v1')
    a('v_and_b32 v3, 7, v1')
    a('v_lshrrev_b32 v4, 1, v2')
    a('v_xor_b32 v5, v3, v4')
    a(f's_lshl_b32 s52, s{sTB}, 7')
    a('s_lshl_b32 s53, s50, 5')
    a('s_add_u32 s52, s52, s53')
    a('v_add_u32 v6, s52, v2')
    a('v_lshlrev_b32 v6, 10, v6')
    a('v_lshl_add_u32 v8, v5, 4, v6')
    a('v_add_u32 v9, 0x2000, v8')
    a('v_xor_b32 v9, 64, v9')
    a('v_add_u32 v10, 0x4000, v8')
    a('v_add_u32 v11, 0x4000, v9')
    a('v_lshrrev_b32 v5, 2, v1')
    a('s_lshl_b32 s53, s50, 4')
    a('v_add_u32 v5, s53, v5')
    a('v_mul_u32_u24 v5, 3072, v5')
    a('v_and_b32 v6, 3, v1')
    a('v_lshl_add_u32 v5, v6, 4, v5')
    a(f's_lshl_b32 s53, s{sHP}, 6')
    a('v_add_u32 v12, s53, v5')
    a('s_lshl_b32 s54, s50, 12')
    a('s_lshl_b32 s55, s50, 10')
    a('s_add_u32 s55, s55, 16384')
    def nx(s_): return 3 if 8 <= s_ <= 12 else 7
    def stage(s_):
        sa = slotaddr(s_)
        ks = s_ if s_ < 8 else (s_ - 5 if s_ <= 12 else s_ - 13)
        wsrd = sWA if s_ < 8 else sWB
        a(f's_add_u32 s57, s{sK0}, {ks}')
        a('s_and_b32 s57, s57, 7')
        a('s_lshl_b32 s56, s57, 7')
        a('s_mul_i32 s57, s57, 196608')
        if nx(s_) == 7:
            for qq in range(4):
                a(f's_add_u32 m0, s54, {sa+qq*1024}')
                a('s_nop 0')
                a(f'buffer_load_dwordx4 v{8+qq}, s[{sX}:{sX+3}], s56 offen lds')
        for g in range(3):
            a(f's_add_u32 m0, s55, {sa+g*4096}')
            if g: a('s_add_u32 s57, s57, 1024')
            else: a('s_nop 0')
            a(f'buffer_load_dwordx4 v12, s[{wsrd}:{wsrd+3}], s57 offen lds')
    stage(0)
    srd(a, sT, 16, 1024)
    a('v_lshlrev_b32 v13, 4, v1')
    a('s_and_b32 s45, s50, 1')
    a('s_lshl_b32 s45, s45, 10')
    a(f's_add_u32 m0, s45, {GWL}')
    a('s_nop 0')
    a(f'buffer_load_dwordx4 v13, s[{sT}:{sT+3}], 0 offen lds')
    stage(1)
    srd(a, sWB, 12, 512*3072)
    common_late()
    st.mark(1)
    issued = [0, 1]
    def wait_for(s_):
        n = sum(nx(t) for t in issued if t > s_)
        a(f's_waitcnt vmcnt({n})')
    def issue(t):
        stage(t); issued.append(t)
    wait_for(0); a('s_barrier')
    issue(2); issue(3)
    wait_for(1); a('s_barrier')
    issue(4); issue(5)
    for s_ in range(2, 12):
        wait_for(s_); a('s_barrier')
        issue(s_+4)
        if s_ in (3, 7): st.mark({3:2, 7:3}[s_])
    st.mark(4)
    for s_ in (12, 13, 14):
        wait_for(s_); a('s_barrier')
    a(f's_lshl_b32 s59, s{sHP}, 9')
    a(f's_add_u32 s59, s59, {FA_OFF}')
    a(f'buffer_load_dwordx2 {v(vFL,2)}, v{vL8}, {WS}, s59 offen sc1')
    a('s_waitcnt vmcnt(1)'); a('s_barrier')
    a('s_waitcnt vmcnt(0)')
    emit_poll(a, name+'_fa', vL8, 59)
    st.mark(5)
    from v3_attn import emit_attn, emit_first
    class G: pass
    g_ = G(); g_.a = a; g_.st = st; g_.name = name; g_.end = end; g_.upto = upto; g_.stamp = stamp; g_.opt = opt
    g_.p_epilogue = p_epilogue; g_.pflag = pflag; g_.q = q
    emit_first(g_)
    a(f'v_mov_b32 v{vVst}, 0x40000000')
    a(f'v_mov_b32 v{vKst}, 0x40000000')
    a(f's_mov_b32 s{sST}, 0')
    a(f's_mov_b32 s{sST+1}, 0')
    a('s_barrier')
    a.label(name + '_attn')
    emit_attn(g_)
    a.label(end)
    a('s_endpgm')
    return a.text(), dict(name=name, vgpr=256, sgpr=96, lds=LDS_TOTAL, block=512, grid=256)
```

```python
from asmlib import *
from layout import *
from v3 import *

KA = [24,28,32,36]; VA = [40,48,56,64]
QA = [72,76,80,84]
S = [88,104]; P = [120,128]
O = [136,176,192,208]
CF = 224; CL = 240
KBx = {4:216,5:220,6:72,7:76,8:80}; VBx = {4:176,5:184,6:192,7:200,8:208}
def KB(i): return KA[i] if i < 4 else KBx[i]
def VB(i): return VA[i] if i < 4 else VBx[i]
QB = 8
BT = 0; SCRC4 = 49152; ONESB = 162304
WA0 = 49152; WB0 = 114688; WB1 = 0; RS = 49152
vKa = 158; vVa = 159; vVs = 160

sKQ=51; sKV=52; sKB=53; sGT=54; sN=55; sIT=56; sFO=57; sOB=58; sCB=60; sTT=61; sCT=62; sKH=63; sOO=66; sKV0=68; sKVE=69; sBT0=49; sBD=50; sPOL=48; sSA=49; sDA=50; sSB=70; sDB=71; sCA=52; sCB2=53
def v_addr(soff): return f'v_mad_u32_u24 v{vVV}, s{soff}, v{vRe}, v{vVo}'
def k_load(kreg, soff): return f'buffer_load_dwordx4 {v(kreg,4)}, v{vL16}, {WS}, s{soff} offen sc1'
def v_load(vreg, u): return f'buffer_load_dwordx4 {v(vreg+4*u,4)}, v{vVV}, {WS}, 0 offen offset:{512*u} sc1'
def tile_loads(kreg, vreg, soff):
    return [v_addr(soff), k_load(kreg, soff), v_load(vreg, 0), v_load(vreg, 1)]
def adv(): return [f's_add_u32 s{sKV}, s{sKV}, 2048', f's_cmp_eq_u32 s{sKV}, s{sKVE}', f's_cselect_b32 s{sKV}, s{sKV0}, s{sKV}']

def emit_first(g):
    a = g.a
    a(f's_and_b32 s{sKQ}, s{sWAVE}, 3')
    a('v_lshrrev_b32 v3, 5, v1')
    a('v_and_b32 v4, 15, v1')
    a('v_lshlrev_b32 v4, 4, v4')
    a('v_lshl_add_u32 v5, v3, 8, v4')
    a('v_add_u32 v5, 1024, v5')
    a('s_lshl_b32 s45, s2, 10')
    a(f's_add_u32 s45, s45, {ONESG_OFF}')
    a('v_add_u32 v4, s45, v4')
    a('v_bfe_u32 v6, v1, 4, 1')
    a(f'v_xor_b32 v{vRe}, 1, v6')
    a(f'v_mul_u32_u24 v5, v5, v{vRe}')
    a('v_sub_u32 v6, 0, v6')
    a('v_and_b32 v4, v4, v6')
    a(f'v_add_u32 v{vVo}, v4, v5')
    a(f's_lshl_b32 s45, s{sH}, 6')
    a(f's_lshl_b32 s46, s{sKQ}, 4')
    a('s_add_u32 s45, s45, s46')
    a('s_lshl_b32 s45, s45, 11')
    a(f's_add_u32 s{sKV0}, s45, {KV_OFF}')
    a(f's_add_u32 s{sKVE}, s{sKV0}, 32768')
    a(f's_and_b32 s45, s{sTB}, 7')
    a('s_lshl_b32 s45, s45, 12')
    a(f's_add_u32 s{sKV}, s{sKV0}, s45')
    for t in range(2):
        if t:
            for x in adv(): a(x)
        for x in tile_loads(KA[t], VA[t], sKV): a(x)
    g.st.mark(6)

def emit_attn(g):
    a = g.a; st = g.st; name = g.name; end = g.end; opt = g.opt
    def emit(l):
        for x in l: a(x)
    for y in range(4):
        a(f's_add_u32 s45, s{sKQ}, {y}')
        a('s_and_b32 s45, s45, 3')
        a(f's_lshl_b32 s46, s{sE}, 2')
        a('s_add_u32 s45, s45, s46')
        a('s_lshl_b32 s45, s45, 10')
        a(f's_add_u32 s45, s45, {QSA}')
        a(f'v_add_u32 v4, s45, v{vL16}')
        a(f'ds_read_b128 {v(QA[y],4)}, v4')
    a('v_and_b32 v2, 31, v1')
    a(f's_lshl_b32 s45, s{sKQ}, 7')
    a(f's_add_u32 s45, s45, {GST}')
    a('v_lshlrev_b32 v4, 2, v2')
    a('v_add_u32 v4, s45, v4')
    a(f'ds_read_b32 v{vG}, v4')
    a(f's_lshl_b32 s45, s{sTB}, 2')
    a(f's_add_u32 s{sGT}, s45, s{sKQ}')
    a(f's_add_u32 s45, s{sH}, 32')
    a('s_lshl_b32 s45, s45, 17')
    a(f's_add_u32 s{sKB}, s45, {KV_OFF}')
    a(f's_min_u32 s{sN}, s{sGT}, 8')
    a(f's_add_u32 s{sN}, s{sN}, 1')
    a(f's_lshl_b32 s45, s{sTB}, 2')
    a(f's_mul_i32 s46, s{sKQ}, 3')
    a('s_add_u32 s45, s45, s46')
    a(f's_sub_u32 s{sBT0}, s45, 8')
    a(f's_mul_i32 s45, s{sE}, 12')
    a('s_add_u32 s45, s45, s46')
    a(f's_lshl_b32 s{sBD}, s45, 11')
    emit(adv()); emit(tile_loads(KA[2], VA[2], sKV))
    a('s_waitcnt vmcnt(6) lgkmcnt(0)')
    a(mm(S[0], KA[0], QA[0], '0'))
    a('s_nop 7')
    a('s_nop 3')
    st.mark(7)
    def body(last, first=False):
        for k in range(4):
            for y in range(4):
                u = 4*k + y
                tn, yn = divmod(u+1, 4); tp, yp = divmod(u-1, 4)
                c0 = '0' if (first and u >= 1 and u <= 4) else O[yp]
                mf = [mm(S[(u+1)&1], KA[tn&3], QA[yn], '0'),
                      mm(O[yp], VA[tp&3], P[(u-1)&1], c0), mm(O[yp], VA[tp&3]+4, P[(u-1)&1]+4, O[yp])]
                if first and u == 0: mf[1] = mf[2] = None
                if last and u == 15: mf[0] = None
                sl = [[], [], []]
                b = (k+3) & 3
                bt = last and k >= 1
                if not bt:
                    if y == 0:
                        ad = adv(); sl[1] = [ad[0]]; sl[2] = ad[1:]
                    if y == 1:
                        sl[0] = [v_addr(sKV)]; sl[1] = [k_load(KA[b], sKV)]; sl[2] = [v_load(VA[b], 0)]
                    if y == 2:
                        sl[0] = [v_load(VA[b], 1)]; sl[2] = ['s_waitcnt vmcnt(6)']
                else:
                    if y == 0:
                        sl[0] = [f's_add_i32 s45, s{sBT0}, {k-1}']; sl[1] = ['s_max_i32 s45, s45, 0', 's_lshl_b32 s45, s45, 11']
                        sl[2] = [f's_add_u32 s45, s45, s{sKB}', f's_add_u32 m0, s{sBD}, {(k-1)*2048}']
                    if y == 1:
                        sl[1] = [f'buffer_load_dwordx4 v{vL16}, {WS}, s45 offen sc1 lds']
                        sl[2] = [f'buffer_load_dwordx4 v{vL16}, {WS}, s45 offen offset:1024 sc1 lds']
                    if y == 2 and k == 2: sl[2] = ['s_waitcnt vmcnt(4)']
                if y == 3 and first:
                    st_ = [f'buffer_store_dwordx4 v[8:11], v{vKst}, {WS}, s{sST} offen sc1',
                           f'buffer_store_dwordx4 v[12:15], v{vKst}, {WS}, s{sST+1} offen sc1',
                           f'buffer_store_dwordx4 v[16:19], v{vVst}, {WS}, s{sST} offen offset:1024 sc1',
                           f'buffer_store_dwordx4 v[20:23], v{vVst}, {WS}, s{sST} offen offset:1536 sc1']
                    sl[1] = [st_[k]]
                if y == 3 and last and k == 0:
                    sl[2] = ['s_waitcnt vmcnt(3)', ('poll',)]
                unit(a, S[u&1], P[u&1], mf, sl)
    if opt.get('prio',1): a('s_setprio 3')
    body(False, first=True)
    if opt.get('prio',1): a('s_setprio 2')
    adbg = opt.get('adbg', 0)
    if adbg: st.mark(8)
    srd(a, sWA, 8, 512*1024)
    srd(a, sWB, 14, 512*1024)
    a('v_lshrrev_b32 v6, 3, v1')
    a('v_bfe_u32 v7, v1, 4, 1')
    a('v_lshlrev_b32 v7, 2, v7')
    a(f'v_and_b32 v{vWo}, 7, v1')
    a(f'v_xor_b32 v{vWo}, v{vWo}, v7')
    a(f'v_lshlrev_b32 v{vWo}, 4, v{vWo}')
    a(f'v_lshl_add_u32 v{vWo}, v6, 10, v{vWo}')
    a('s_lshr_b32 s45, s2, 5')
    a('s_lshl_b32 s45, s45, 7')
    a(f'v_add_u32 v{vWo}, s45, v{vWo}')
    def wo_dma(br, h0, nh, dst):
        sr = sWA if br == 0 else sWB
        n = nh*2//8
        a(f's_mul_i32 s45, s{sWAVE}, {n*8192}')
        a(f's_add_u32 s45, s45, {h0*16*1024}')
        a(f's_mul_i32 s46, s{sWAVE}, {n*1024}')
        for i in range(n):
            a(f's_add_u32 m0, s46, {dst + i*1024}')
            if i: a('s_add_u32 s45, s45, 8192')
            else: a('s_nop 0')
            a(f'buffer_load_dwordx4 v{vWo}, s[{sr}:{sr+3}], s45 offen lds')
    a(f's_cmp_lg_u32 s{sWAVE}, 0')
    a(f's_cbranch_scc1 {name}_no1')
    for r in range(4): a(f'v_mov_b32 v{vT+2+r}, 0x3f803f80')
    a(f'v_add_u32 v4, {ONESB}, v{vL16}')
    a(f'ds_write_b128 v4, {v(vT+2,4)}')
    a.label(name + '_no1')
    if adbg: st.mark(9)
    a(f's_mov_b32 s{sIT}, 0')
    loop = name + '_aloop'
    a('.p2align 6')
    a.label(loop)
    body(False)
    a(f's_cmp_lg_u32 s{sIT}, 0')
    a(f's_cbranch_scc1 {name}_h2')
    if opt.get('wopf', 1):
        lab = a.newlabel(name + '_wpf')
        a(f's_cmp_ge_u32 s{sWAVE}, 4')
        a(f's_cbranch_scc1 {lab}')
        a('s_bfe_u32 s45, s2, 0x20003')
        a('s_lshl_b32 s45, s45, 2')
        a(f's_add_u32 s45, s45, s{sWAVE}')
        a('s_lshr_b32 s46, s2, 5')
        a('s_lshl_b32 s46, s46, 7')
        a('v_lshlrev_b32 v4, 10, v1')
        a('v_add_u32 v4, s46, v4')
        a('s_and_b32 s46, s45, 7')
        a('s_lshl_b32 s46, s46, 16')
        a('s_cmp_ge_u32 s45, 8')
        a(f's_cbranch_scc1 {lab}_b')
        a(f'buffer_load_dword v{vT}, v4, s[{sWA}:{sWA+3}], s46 offen')
        a(f's_branch {lab}')
        a.label(lab + '_b')
        a(f'buffer_load_dword v{vT}, v4, s[{sWB}:{sWB+3}], s46 offen')
        a.label(lab)
    if adbg: st.mark(10)
    a(f's_mov_b32 s{sIT}, 1')
    if opt.get('prio',1): a('s_setprio 1')
    a(f's_cmp_ge_u32 s{sWAVE}, 4')
    a(f's_cbranch_scc1 {loop}')
    g.pflag(FB_OFF)
    a(f's_branch {loop}')
    a.label(name + '_h2')
    if adbg: st.mark(11)
    a(f's_lshl_b32 s59, s{sHP}, 9')
    a(f's_add_u32 s59, s59, {FB_OFF}')
    a(f'buffer_load_dwordx2 {v(vFL,2)}, v{vL8}, {WS}, s59 offen sc1')
    if opt.get('prio',1): a('s_setprio 0')
    body(True)
    if adbg:
        st.mark(12); st.flush(sWAVE, sWS, WS_USED); st.on = False
    st.mark(8)
    a('s_nop 0')
    a(mm(O[3], VA[3], P[1], O[3]))
    a(mm(O[3], VA[3]+4, P[1]+4, O[3]))
    a('v_lshlrev_b32 v3, 2, v1')
    for y in (1,2,3):
        a(f's_add_u32 s45, s{sKQ}, {y}')
        a('s_and_b32 s45, s45, 3')
        a(f's_lshl_b32 s46, s{sE}, 2')
        a('s_add_u32 s45, s45, s46')
        a('s_mul_i32 s45, s45, 6912')
        a(f's_add_u32 s45, s45, {SCRC4 + (y-1)*2304}')
        a(f'v_add_u32 v4, s45, v{vL16}')
        a('v_add_u32 v5, s45, v3')
        if y == 3: a('s_nop 3')
        a(f'ds_write_b128 v4, {v(O[y],4)}')
        a(f'ds_write_b128 v4, {v(O[y]+4,4)} offset:1024')
        a(f'ds_write_b32 v5, v{O[y]+8} offset:2048')
    a('v_and_b32 v2, 31, v1')
    a('v_lshrrev_b32 v7, 5, v1')
    a(f's_mul_i32 s45, s{sE}, 12')
    a(f's_add_u32 s45, s45, s{sKQ}')
    a('s_lshl_b32 s45, s45, 11')
    a(f'v_add_u32 v{vKa}, s45, v{vL16}')
    a('v_and_b32 v4, 15, v1')
    a('v_lshlrev_b32 v4, 4, v4')
    a('v_lshl_add_u32 v5, v7, 8, v4')
    a(f's_add_u32 s45, s45, {8*2048 + 1024}')
    a('v_add_u32 v5, s45, v5')
    a(f'v_add_u32 v4, {ONESB}, v4')
    a(f'v_mul_u32_u24 v5, v5, v{vRe}')
    a(f'v_xor_b32 v6, 1, v{vRe}')
    a('v_mul_u32_u24 v4, v4, v6')
    a(f'v_add_u32 v{vVa}, v4, v5')
    a(f'v_lshlrev_b32 v{vVs}, 11, v{vRe}')
    a('v_lshlrev_b32 v6, 2, v7')
    a('v_sub_u32 v6, v2, v6')
    a(f's_mov_b32 s45, {NEG:#x}')
    for r in range(16):
        b = (r & 3) + 8*(r >> 2)
        a(f'v_subrev_u32 v7, {b}, v6')
        a('v_ashrrev_i32 v7, 31, v7')
        a(f'v_and_b32 v{CL+r}, s45, v7')
        a(f'v_xor_b32 v{CF+r}, s45, v{CL+r}')
    a(f's_lshl_b32 s45, s{sWAVE}, 10')
    a(f's_add_u32 s45, s45, {QSB}')
    a(f'v_add_u32 v4, s45, v{vL16}')
    a('s_waitcnt vmcnt(0) lgkmcnt(0)')
    a('s_barrier')
    def kB(i): return f'ds_read_b128 {v(KA[i&1],4)}, v{vKa} offset:{(8-i)*2048}'
    def vB(i, u): return f'ds_read_b128 {v(VA[i&1]+4*u,4)}, v{vVa} offset:{u*512}'
    a(f'ds_read_b128 {v(QB,4)}, v4')
    a(kB(0)); a(kB(1))
    a(f's_mul_i32 s45, s{sWAVE}, 6912')
    a(f's_add_u32 s45, s45, {SCRC4}')
    a(f'v_add_u32 v4, s45, v{vL16}')
    a('v_add_u32 v5, s45, v3')
    R = [88+16, 88+16+12, 120+12]
    R = [176, 192, 208]
    for i in range(3):
        a(f'ds_read_b128 {v(R[i],4)}, v4 offset:{i*2304}')
        a(f'ds_read_b128 {v(R[i]+4,4)}, v4 offset:{i*2304+1024}')
        a(f'ds_read_b32 v{R[i]+8}, v5 offset:{i*2304+2048}')
    a('s_waitcnt lgkmcnt(9)')
    a(mm(S[0], KA[0], QB, CL))
    a('s_waitcnt lgkmcnt(0)')
    for i in range(3):
        for r in range(9): a(f'v_add_f32 v{O[0]+r}, v{O[0]+r}, v{R[i]+r}')
    TT = 161
    a(f'v_rcp_f32 v{TT+1}, v{O[0]+8}')
    a('s_nop 0')
    a(f'v_mul_f32 v{TT}, v{vG}, v{TT+1}')
    for r in range(8): a(f'v_mul_f32 v{O[0]+r}, v{O[0]+r}, v{TT}')
    PK = 164
    for r in range(4): a(f'v_cvt_pk_bf16_f32 v{PK+r}, v{O[0]+2*r}, v{O[0]+2*r+1}')
    a(f's_lshl_b32 s45, s{sGT}, 5')
    a(f's_add_u32 s45, s45, s{sH}')
    a('s_lshl_b32 s46, s45, 3')
    a(f's_add_u32 s{sFO}, s46, {FOA_OFF}')
    a('s_lshl_b32 s45, s45, 10')
    a(f's_add_u32 s{sOO}, s45, {OF_OFF}')
    a(f'buffer_store_dwordx4 {v(PK,4)}, v{vL16}, {WS}, s{sOO} offen sc1')
    a(f's_lshl_b32 s{sSA}, s{sWAVE}, 16')
    a(f's_lshl_b32 s{sDA}, s{sWAVE}, 13')
    a(f's_add_u32 s{sDA}, s{sDA}, {WA0}')
    a(f's_lshl_b32 s{sSB}, s{sWAVE}, 15')
    a(f's_lshl_b32 s{sDB}, s{sWAVE}, 12')
    a(f's_add_u32 s{sDB}, s{sDB}, {WB0}')
    a(f's_mov_b32 s{sCA}, 8')
    a(f's_mov_b32 s{sCB2}, 4')
    a('s_barrier')
    st.mark(9)
    if g.upto == 'A':
        a('s_waitcnt vmcnt(0)'); st.flush(sWAVE, sWS, WS_USED); a('s_endpgm'); return
    a('s_and_b32 s45, s2, 7')
    a('s_lshl_b32 s45, s45, 2')
    a('s_bfe_u32 s46, s2, 0x20003')
    a(f's_add_u32 s{sOB}, s45, s46')
    a(f's_lshr_b32 s{sCB}, s2, 5')
    a(f's_lshl_b32 s59, s{sOB}, 9')
    a(f's_add_u32 s59, s59, {FOA_OFF}')
    a(f's_mov_b32 s{sPOL}, 0')
    def dmaA(): return [f's_mov_b32 m0, s{sDA}', f's_sub_u32 s{sCA}, s{sCA}, 1', f'buffer_load_dwordx4 v{vWo}, s[{sWA}:{sWA+3}], s{sSA} offen lds',
                        f's_add_u32 s{sSA}, s{sSA}, 8192', f's_add_u32 s{sDA}, s{sDA}, 1024']
    def dmaB(): return [f's_mov_b32 m0, s{sDB}', f's_sub_u32 s{sCB2}, s{sCB2}, 1', f'buffer_load_dwordx4 v{vWo}, s[{sWB}:{sWB+3}], s{sSB} offen lds',
                        f's_add_u32 s{sSB}, s{sSB}, 8192', f's_add_u32 s{sDB}, s{sDB}, 1024']
    def foa_hook(n=0):
        a(f's_waitcnt vmcnt({n})')
        flag_store(a, sFO)
    def foa_poll():
        lab = a.newlabel(name + '_fp')
        a(f's_cmp_lg_u32 s{sWAVE}, 0')
        a(f's_cbranch_scc1 {lab}')
        a(f'buffer_load_dwordx2 {v(vFL,2)}, v{vL8}, {WS}, s59 offen sc1')
        a(f's_mov_b32 s{sPOL}, 1')
        a.label(lab)
    tails = [name+'_btail0', name+'_btail1']
    if opt.get('prio',1): a('s_setprio 1')
    for i in range(8):
        a(f's_cmp_le_u32 s{sN}, {i+1}')
        a(f's_cbranch_scc1 {tails[i&1]}' if i > 0 else f's_cbranch_scc1 {name}_btail_first')
        if i > 0: a('s_waitcnt lgkmcnt(0)')
        up = (i-1) & 1
        mf = [mm(S[(i+1)&1], KA[(i+1)&1], QB, CF if i+1 == 8 else '0'),
              mm(O[0], VA[up], P[up], '0' if i == 1 else O[0]), mm(O[0], VA[up]+4, P[up]+4, O[0])]
        if i == 0: mf[1] = mf[2] = None
        sl = [[vB(i,0), vB(i,1)] + ([kB(i+2)] if i+2 <= 8 else []), [], []]
        if i < 4: sl[1] = dmaA(); sl[2] = dmaA()
        elif i < 6: sl[1] = dmaB(); sl[2] = dmaB()
        unit(a, S[i&1], P[i&1], mf, sl)
        a(f'v_sub_u32 v{vVa}, v{vVa}, v{vVs}')
        if i == 3:
            if opt.get('tdbg'): st.mark(7)
            foa_hook(8)
            if opt.get('tdbg'): st.mark(8)
            if opt.get('prio',1): a('s_setprio 0')
        if i == 6: foa_poll()
    a(f's_branch {tails[0]}')
    a.label(name + '_btail_first')
    a(vB(0,0)); a(vB(0,1))
    unit(a, S[0], P[0], [None, None, None], [[],[],[]])
    a('s_waitcnt lgkmcnt(0)')
    a(mm(O[0], VA[0], P[0], '0'))
    a(mm(O[0], VA[0]+4, P[0]+4, O[0]))
    a(f's_branch {name}_bdone')
    for par in (0,1):
        a.label(tails[par])
        up = par ^ 1
        a('s_waitcnt lgkmcnt(0)')
        a(vB(par,0)); a(vB(par,1))
        lab = a.newlabel(name + '_z')
        if par == 1:
            a(f's_cmp_lg_u32 s{sN}, 2')
            a(f's_cbranch_scc1 {lab}')
            for r in range(16): a(f'v_mov_b32 v{O[0]+r}, 0')
            a('s_nop 1')
            a.label(lab)
        mf = [None, mm(O[0], VA[up], P[up], O[0]), mm(O[0], VA[up]+4, P[up]+4, O[0])]
        unit(a, S[par], P[par], mf, [[],[],[]])
        a('s_waitcnt lgkmcnt(0)')
        a(mm(O[0], VA[par], P[par], O[0]))
        a(mm(O[0], VA[par]+4, P[par]+4, O[0]))
        if par == 0: a(f's_branch {name}_bdone')
    a.label(name+'_bdone')
    a(f's_cmp_gt_u32 s{sN}, 4')
    a(f's_cbranch_scc1 {name}_bdone2')
    foa_hook()
    a.label(name+'_bdone2')
    if opt.get('prio',1): a('s_setprio 0')
    for cnt, mac in ((sCA, dmaA), (sCB2, dmaB)):
        top = a.newlabel(name + '_lo'); done = a.newlabel(name + '_ld')
        a.label(top)
        a(f's_cmp_eq_u32 s{cnt}, 0')
        a(f's_cbranch_scc1 {done}')
        emit(mac())
        a(f's_branch {top}')
        a.label(done)
    st.mark(10)
    a(f's_cmp_lg_u32 s{sWAVE}, 0')
    a(f's_cbranch_scc1 {name}_t1')
    a(f's_cmp_lg_u32 s{sPOL}, 0')
    a(f's_cbranch_scc1 {name}_t0')
    a(f'buffer_load_dwordx2 {v(vFL,2)}, v{vL8}, {WS}, s59 offen sc1')
    a.label(name + '_t0')
    a('s_waitcnt vmcnt(0)')
    emit_poll(a, name+'_foa', vL8, 59)
    a.label(name + '_t1')
    if opt.get('tdbg'): st.mark(1)
    a(f'v_sub_f32 v{TT}, 1.0, v{vG}')
    a(f'v_cvt_pk_bf16_f32 v{TT}, v{TT}, v{TT}')
    a(f'v_lshlrev_b32 v{TT}, 16, v{TT}')
    a('s_nop 7')
    a('s_nop 1')
    a(f'v_rcp_f32 v{TT+1}, v{O[0]+8}')
    a('s_nop 0')
    a(f'v_mul_f32 v{TT}, v{TT}, v{TT+1}')
    for r in range(8): a(f'v_mul_f32 v{O[0]+r}, v{O[0]+r}, v{TT}')
    for r in range(4): a(f'v_cvt_pk_bf16_f32 v{PK+r}, v{O[0]+2*r}, v{O[0]+2*r+1}')
    a(f's_add_u32 s45, s{sOO}, {64*32*1024}')
    a(f's_add_u32 s{sFO}, s{sFO}, {FOB_OFF-FOA_OFF}')
    a(f'buffer_store_dwordx4 {v(PK,4)}, v{vL16}, {WS}, s45 offen sc1')
    if g.upto == 'B':
        a('s_waitcnt vmcnt(0)'); st.flush(sWAVE, sWS, WS_USED); a('s_endpgm'); return
    sK4 = sKH
    a(f's_and_b32 s{sTT}, s{sWAVE}, 1')
    a(f's_lshr_b32 s{sK4}, s{sWAVE}, 1')
    a(f's_lshl_b32 s45, s{sOB}, 1')
    a(f's_add_u32 s45, s45, s{sTT}')
    a('s_lshl_b32 s45, s45, 5')
    a(f's_lshl_b32 s46, s{sK4}, 3')
    a('s_add_u32 s45, s45, s46')
    a('s_lshl_b32 s45, s45, 10')
    a(f's_add_u32 s{sOO}, s45, {OF_OFF}')
    a('v_bfe_u32 v4, v1, 2, 2')
    a('v_and_b32 v5, 3, v1')
    a('v_bfe_u32 v6, v1, 4, 1')
    a('v_lshlrev_b32 v6, 1, v6')
    a('v_lshrrev_b32 v7, 1, v5')
    a('v_add_u32 v6, v6, v7')
    a(f's_and_b32 s45, s{sK4}, 1')
    a('s_lshl_b32 s45, s45, 1')
    a(f's_and_b32 s46, s{sK4}, 2')
    a('s_lshl_b32 s46, s46, 1')
    a('s_or_b32 s45, s45, s46')
    a('v_xor_b32 v6, s45, v6')
    a('v_bfe_u32 v7, v4, 1, 1')
    a('v_lshlrev_b32 v7, 2, v7')
    a('v_xor_b32 v6, v6, v7')
    a('v_lshlrev_b32 v6, 4, v6')
    a('v_and_b32 v5, 1, v5')
    a('v_lshl_add_u32 v6, v5, 3, v6')
    a('v_lshrrev_b32 v5, 5, v1')
    a('v_lshl_add_u32 v4, v5, 2, v4')
    a('v_lshl_add_u32 v6, v4, 7, v6')
    a(f's_lshl_b32 s45, s{sK4}, 14')
    a(f's_add_u32 s46, s45, {WA0}')
    a('v_add_u32 v8, s46, v6')
    a('v_xor_b32 v9, 64, v8')
    a(f's_cmp_lt_u32 s{sK4}, 2')
    a(f's_cselect_b32 s46, {WB0}, 0')
    a(f's_and_b32 s45, s45, {16384}')
    a('s_add_u32 s46, s46, s45')
    a('v_add_u32 v10, s46, v6')
    a('v_xor_b32 v11, 64, v10')
    OF_ = 176; WF = 16; ACC = [96, 112]
    def o_loads(br):
        for i in range(8):
            if i % 4 == 0: a(f's_add_u32 s45, s{sOO}, {br*64*32*1024 + i*1024}')
            a(f'buffer_load_dwordx4 {v(OF_+4*i,4)}, v{vL16}, {WS}, s45 offen offset:{(i%4)*1024} sc1')
    def wo_reads(va):
        for i in range(8):
            for ct in range(2):
                a(f'ds_read_b64_tr_b16 {v(WF+8*i+4*ct,2)}, v{va+ct} offset:{i*2048}')
                a(f'ds_read_b64_tr_b16 {v(WF+8*i+4*ct+2,2)}, v{va+ct} offset:{i*2048+1024}')
    def part(first, base):
        for i in range(8):
            a(f's_waitcnt vmcnt({base + 7 - i})')
            for ct in range(2):
                a(mm(ACC[ct], WF+8*i+4*ct, OF_+4*i, '0' if (first and i == 0) else ACC[ct]))
    if opt.get('tdbg'): st.mark(2)
    a('s_waitcnt vmcnt(1) lgkmcnt(0)')
    if opt.get('tdbg'): st.mark(3)
    a('s_barrier')
    st.mark(11)
    o_loads(0)
    wo_dma(1, 16, 16, WB1)
    wo_reads(8)
    if opt.get('tdbg'): st.mark(4)
    a('s_waitcnt vmcnt(12)')
    if opt.get('tdbg'): st.mark(5)
    flag_store(a, sFO)
    a('s_waitcnt lgkmcnt(0)')
    part(True, 5)
    if opt.get('tdbg'): st.mark(6)
    a(f's_add_u32 s59, s59, {FOB_OFF-FOA_OFF}')
    a(f's_cmp_lg_u32 s{sWAVE}, 0')
    a(f's_cbranch_scc1 {name}_t3')
    emit_poll(a, name+'_fob', vL8, 59, first_issued=False)
    a.label(name + '_t3')
    a('s_waitcnt vmcnt(0)')
    a('s_barrier')
    st.mark(12)
    o_loads(1)
    wo_reads(10)
    a('s_waitcnt lgkmcnt(0)')
    part(False, 0)
    st.mark(13)
    a('s_nop 7')
    for y in (1,2,3):
        a(f's_xor_b32 s45, s{sK4}, {y}')
        a(f's_lshl_b32 s46, s{sTT}, 2')
        a('s_add_u32 s45, s45, s46')
        a('s_mul_i32 s45, s45, 6144')
        a(f's_add_u32 s45, s45, {RS + (y-1)*2048}')
        a(f'v_add_u32 v4, s45, v{vL16}')
        a(f'ds_write_b128 v4, {v(ACC[0]+8*y,4)}')
        a(f'ds_write_b128 v4, {v(ACC[0]+8*y+4,4)} offset:1024')
    a(f's_lshl_b32 s46, s{sTT}, 2')
    a(f's_add_u32 s45, s{sK4}, s46')
    a('s_mul_i32 s45, s45, 6144')
    a(f's_add_u32 s45, s45, {RS}')
    a(f'v_add_u32 v4, s45, v{vL16}')
    srd(a, sT, 18, 2048*1024)
    a('v_and_b32 v6, 31, v1')
    a(f's_lshl_b32 s45, s{sOB}, 6')
    a(f's_lshl_b32 s46, s{sTT}, 5')
    a('s_add_u32 s45, s45, s46')
    a('v_add_u32 v6, s45, v6')
    a('v_lshlrev_b32 v6, 10, v6')
    a('v_lshrrev_b32 v5, 5, v1')
    a('v_lshl_add_u32 v6, v5, 4, v6')
    a(f's_lshl_b32 s45, s{sCB}, 7')
    a(f's_lshl_b32 s46, s{sK4}, 5')
    a('s_add_u32 s45, s45, s46')
    a('s_waitcnt lgkmcnt(0)')
    a('s_barrier')
    for i in range(3):
        a(f'ds_read_b128 {v(16+8*i,4)}, v4 offset:{i*2048}')
        a(f'ds_read_b128 {v(16+8*i+4,4)}, v4 offset:{i*2048+1024}')
    for i in range(3):
        a(f's_waitcnt lgkmcnt({4-2*i})')
        for r in range(8): a(f'v_add_f32 v{ACC[0]+r}, v{ACC[0]+r}, v{16+8*i+r}')
    for r in range(4): a(f'v_cvt_pk_bf16_f32 v{48+r}, v{ACC[0]+2*r}, v{ACC[0]+2*r+1}')
    a('s_nop 1')
    a('v_permlane32_swap_b32 v48, v50')
    a('v_permlane32_swap_b32 v49, v51')
    a(f'buffer_store_dwordx4 v[48:51], v6, s[{sT}:{sT+3}], s45 offen')
    a(f's_or_b32 s45, s2, s{sWAVE}')
    a('s_cmp_lg_u32 s45, 0')
    a(f's_cbranch_scc1 {name}_t5')
    a(f's_mov_b32 s45, {FX_OFF}')
    flag_store(a, 45)
    a.label(name + '_t5')
    if g.stamp:
        a('s_waitcnt vmcnt(0)')
        st.flush(sWAVE, sWS, WS_USED)
```

```python
import sys
sys.path.insert(0,'gen')
from v3 import *
KN='gated_mix__softmax_full_mha__sliding_block__prompt_kernel'
def build3(out, **kw):
    t,m=gen_v3(KN, **kw)
    p=check_hazards(t)
    if p: print('HAZARDS'); print('\n'.join(p[:60]))
    hdr = '; single fused kernel; generated by my own generator scripts\n'
    hdr += f"; @launch grid=({m['grid']},1,1) block=({m['block']},1,1) lds={m['lds']}\n"
    txt = hdr + '.amdgcn_target "amdgcn-amd-amdhsa--gfx950"\n.text\n' + t
    txt += f'''.section .rodata,"a"
.p2align 6
.amdhsa_kernel {m['name']}
  .amdhsa_next_free_vgpr {m['vgpr']}
  .amdhsa_next_free_sgpr {m['sgpr']}
  .amdhsa_accum_offset {(m['vgpr']+3)//4*4}
  .amdhsa_group_segment_fixed_size 0
  .amdhsa_kernarg_size 80
  .amdhsa_user_sgpr_count 2
  .amdhsa_user_sgpr_kernarg_segment_ptr 1
  .amdhsa_system_sgpr_workgroup_id_x 1
  .amdhsa_float_denorm_mode_32 3
.end_amdhsa_kernel
'''
    open(out,'w').write(txt)
if __name__=='__main__':
    out=sys.argv[1]
    kw={'opt':{}}
    for x in sys.argv[2:]:
        if x=='stamp': kw['stamp']=True
        elif x.startswith('upto='): kw['upto']=x[5:]
        elif '=' in x:
            k_,v_=x.split('='); kw['opt'][k_]=int(v_)
    build3(out, **kw)
```

```python
import re

class Asm:
    def __init__(self):
        self.lines = []
        self.uid = 0
    def __call__(self, s=''):
        for l in s.split('\n'):
            l = l.strip()
            if l:
                self.lines.append(('    ' + l) if not l.endswith(':') and not l.startswith('.') else l)
    def raw(self, s):
        self.lines.append(s)
    def label(self, name):
        self.lines.append(name + ':')
    def newlabel(self, base):
        self.uid += 1
        return f'{base}_{self.uid}'
    def c(self, s):
        self.lines.append('    ; ' + s)
    def text(self):
        return '\n'.join(self.lines) + '\n'

def v(a, n=1):
    return f'v{a}' if n == 1 else f'v[{a}:{a+n-1}]'
def s(a, n=1):
    return f's{a}' if n == 1 else f's[{a}:{a+n-1}]'

class DSQ:
    def __init__(self, asm):
        self.a = asm
        self.q = []
    def issue(self, line, tag):
        self.a(line)
        self.q.append(tag)
    def wait(self, tags):
        if not isinstance(tags, (list, tuple, set)):
            tags = [tags]
        idx = -1
        for i, t in enumerate(self.q):
            if t in tags:
                idx = i
        if idx < 0:
            return
        n = len(self.q) - 1 - idx
        assert n <= 15, n
        self.a(f's_waitcnt lgkmcnt({n})')
        self.q = self.q[idx+1:]
    def waitall(self):
        if self.q:
            self.a('s_waitcnt lgkmcnt(0)')
        self.q = []

def _regs(tok):
    tok = tok.strip()
    neg = tok.lstrip('-')
    if neg.startswith('abs(') or neg.startswith('|'):
        neg = neg.replace('abs(', '').replace(')', '').replace('|', '')
    m = re.fullmatch(r'([vsa])(\d+)', neg)
    if m:
        return [(m.group(1), int(m.group(2)))]
    m = re.fullmatch(r'([vsa])\[(\d+):(\d+)\]', neg)
    if m:
        return [(m.group(1), i) for i in range(int(m.group(2)), int(m.group(3)) + 1)]
    if neg == 'vcc':
        return [('s', 'vcc')]
    if neg in ('vcc_lo', 'vcc_hi'):
        return [('s', 'vcc')]
    if neg == 'exec':
        return [('s', 'exec')]
    if neg == 'm0':
        return [('s', 'm0')]
    return []

TRANS = ('v_exp_f32', 'v_log_f32', 'v_rcp_f32', 'v_rsq_f32', 'v_sqrt_f32', 'v_sin_f32', 'v_cos_f32', 'v_exp_f16', 'v_rcp_f16')

class Ins:
    def __init__(self, text, lineno):
        self.text = text
        self.lineno = lineno
        t = text.split(';')[0].strip()
        parts = t.split(None, 1)
        self.op = parts[0]
        ops = []
        if len(parts) > 1:
            rest = parts[1]
            cur = ''; depth = 0
            for ch in rest:
                if ch == '[': depth += 1
                if ch == ']': depth -= 1
                if ch == ',' and depth == 0:
                    ops.append(cur.strip()); cur = ''
                else:
                    cur += ch
            if cur.strip(): ops.append(cur.strip())
            if ops:
                last = ops[-1].split()
                ops[-1] = last[0]
                self.mods = last[1:]
            else:
                self.mods = []
        else:
            self.mods = []
        self.ops = ops
        op = self.op
        self.is_mfma = op.startswith('v_mfma')
        self.is_valu = op.startswith('v_') and not self.is_mfma
        self.is_salu = op.startswith('s_')
        self.is_vmem = op.startswith(('buffer_', 'global_', 'flat_'))
        self.is_ds = op.startswith('ds_')
        self.is_trans = any(op.startswith(x) for x in TRANS)
        self.w = []
        self.r = []
        R = [_regs(o) for o in ops]
        if self.is_mfma:
            self.w = R[0]; self.A = R[1]; self.B = R[2]; self.C = R[3] if len(R) > 3 else []
            self.r = self.A + self.B + self.C
        elif self.is_valu:
            if op.startswith('v_cmp'):
                self.w = R[0]; self.r = sum(R[1:], [])
                if op.startswith('v_cmpx'): self.w = self.w + [('s', 'exec')]
            elif op.startswith(('v_readfirstlane', 'v_readlane')):
                self.w = R[0]; self.r = sum(R[1:], [])
            elif op.startswith(('v_add_co', 'v_sub_co', 'v_addc_co', 'v_subb_co', 'v_subrev_co')):
                self.w = R[0] + R[1]; self.r = sum(R[2:], [])
            elif op.startswith(('v_permlane32_swap', 'v_permlane16_swap')):
                self.w = R[0] + R[1]; self.r = R[0] + R[1]
            elif op.startswith(('v_fmac', 'v_dot2c', 'v_mac')):
                self.w = R[0]; self.r = sum(R, [])
            elif op.startswith('v_nop'):
                pass
            else:
                self.w = R[0]; self.r = sum(R[1:], [])
                if op.startswith('v_cndmask') and len(ops) == 3:
                    self.r.append(('s', 'vcc'))
                if 'dst_unused:UNUSED_PRESERVE' in text: self.r += R[0]
        elif self.is_ds:
            if op.startswith(('ds_read', 'ds_bpermute', 'ds_permute', 'ds_swizzle')):
                self.w = R[0]; self.r = sum(R[1:], [])
            else:
                self.r = sum(R, [])
        elif self.is_vmem:
            if 'lds' in self.mods or op.startswith('global_load_lds'):
                self.r = sum(R, []) + [('s', 'm0')]
            elif '_load' in op:
                self.w = R[0]; self.r = sum(R[1:], [])
            elif 'atomic' in op:
                self.r = sum(R, [])
                if 'sc0' in self.mods: self.w = R[0]
            elif 'store' in op:
                self.r = sum(R, [])
                self.data = R[0] if op.startswith('buffer_') else R[1]
        elif self.is_salu:
            if op.startswith(('s_cmp', 's_cbranch', 's_branch', 's_waitcnt', 's_nop', 's_barrier', 's_endpgm', 's_setprio', 's_sleep', 's_bitcmp')):
                self.r = sum(R, [])
            else:
                self.w = R[0] if R else []
                self.r = sum(R[1:], [])
                if 'saveexec' in op: self.w = self.w + [('s', 'exec')]
    def states(self):
        if self.op == 's_nop':
            return int(self.ops[0], 0) + 1
        return 1

def check_hazards(text):
    ins = []; labels = {}
    for n, line in enumerate(text.split('\n'), 1):
        t = line.split(';')[0].strip()
        if not t: continue
        if t.endswith(':'):
            labels[t[:-1]] = len(ins); continue
        if t.startswith('.'):
            continue
        if not re.match(r'^(v_|s_|ds_|buffer_|global_|flat_)', t): continue
        ins.append(Ins(t, n))
    N = len(ins)
    succ = []
    for i, x in enumerate(ins):
        if x.op == 's_endpgm': succ.append([])
        elif x.op == 's_branch': succ.append([labels[x.ops[0]]] if x.ops[0] in labels else [])
        elif x.op.startswith('s_cbranch'):
            sc = [i + 1] if i + 1 < N else []
            if x.ops[0] in labels: sc.append(labels[x.ops[0]])
            succ.append(sc)
        else: succ.append([i + 1] if i + 1 < N else [])
    probs = []
    def ov(a, b):
        return set(a) & set(b)
    def walk(i, maxd, fn):
        stack = [(j, 0) for j in succ[i]]
        seen = set()
        while stack:
            j, d = stack.pop()
            if d >= maxd or (j, d) in seen or j >= N: continue
            seen.add((j, d))
            stop = fn(ins[j], d)
            if stop: continue
            for k in succ[j]:
                stack.append((k, d + ins[j].states()))
    def rep(p, c, d, need, what):
        probs.append(f'{what}: line {p.lineno} "{p.text}" -> line {c.lineno} "{c.text}" has {d} states, needs {need}')
    for i, p in enumerate(ins):
        if p.is_valu:
            wv = [r for r in p.w if r[0] in 'va']
            ws = [r for r in p.w if r[0] == 's']
            if wv:
                def f(c, d, p=p, wv=wv):
                    if c.is_mfma and ov(wv, c.r) and d < 2: rep(p, c, d, 2, 'VALU->MFMA')
                    if c.op.startswith(('v_permlane32_swap', 'v_permlane16_swap')) and ov(wv, c.r) and d < 2: rep(p, c, d, 2, 'VALU->permlane')
                    if c.is_valu and ('dpp' in c.op or 'row_' in c.text or 'quad_perm' in c.text) and c.ops and ov(wv, _regs(c.ops[1])) and d < 2: rep(p, c, d, 2, 'VALU->DPP')
                    if c.op.startswith(('v_readfirstlane', 'v_readlane')) and ov(wv, c.r) and d < 1: rep(p, c, d, 1, 'VALU->readlane')
                    if p.is_trans and c.is_valu and not c.is_trans and ov(wv, c.r) and d < 1: rep(p, c, d, 1, 'trans->VALU')
                    if p.is_trans and c.is_mfma and ov(wv, c.r) and d < 2: rep(p, c, d, 2, 'trans->MFMA')
                    return False
                walk(i, 2, f)
            if ws:
                def f(c, d, p=p, ws=ws):
                    if c.is_vmem and ov(ws, c.r) and d < 5: rep(p, c, d, 5, 'VALU sgpr->VMEM')
                    if c.is_valu and not c.op.startswith(('v_readlane','v_writelane')) and (ov(ws, c.r)) and d < 2: rep(p, c, d, 2, 'VALU sgpr->VALU')
                    if c.op.startswith(('v_readlane', 'v_writelane')) and ov(ws, c.r) and d < 4: rep(p, c, d, 4, 'VALU sgpr->lane sel')
                    if ('s', 'exec') in ws and (c.is_mfma) and d < 4: rep(p, c, d, 4, 'VALU exec->MFMA')
                    return False
                walk(i, 5, f)
        if p.is_mfma:
            passes = 8 if '32x32' in p.op else 4
            need = 12 if passes == 8 else 8
            needc = 10 if passes == 8 else 6
            war = 7 if passes == 8 else 3
            def f(c, d, p=p):
                if c.is_mfma:
                    if ov(p.w, c.A + c.B) and d < need: rep(p, c, d, need, 'MFMA D->MFMA A/B')
                    if ov(p.w, c.C) and (c.C != p.w or c.op != p.op) and d < needc: rep(p, c, d, needc, 'MFMA D->MFMA C partial')
                    if ov(p.w, c.w) and not (c.C == p.w and c.w == p.w) and d < need: rep(p, c, d, need, 'MFMA D->MFMA D WAW (check)')
                elif c.is_valu or c.is_ds or c.is_vmem:
                    if ov(p.w, c.r + c.w) and d < need: rep(p, c, d, need, 'MFMA D->VALU/mem')
                    if c.is_valu and ov(p.C, c.w) and d < war: rep(p, c, d, war, 'MFMA C WAR')
                return False
            walk(i, need, f)
        if p.is_vmem and 'store' in p.op and ('x4' in p.op or 'x3' in p.op):
            def f(c, d, p=p):
                if (c.is_valu or c.is_mfma) and ov(p.data, c.w) and d < 2: rep(p, c, d, 2, 'store data WAR')
                if (c.is_ds or c.is_vmem) and ov(p.data, c.w) and d < 1: rep(p, c, d, 1, 'store data WAR(ld)')
                return False
            walk(i, 2, f)
        if p.is_salu and ('s', 'm0') in p.w:
            def f(c, d, p=p):
                if c.is_vmem and ('s', 'm0') in c.r and d < 1: rep(p, c, d, 1, 'M0->LDSDMA')
                return False
            walk(i, 1, f)
    return probs


class Stamps:
    def __init__(self, a, on, kidx):
        self.a=a; self.on=on; self.n=0; self.kidx=kidx
    def start(self):
        if not self.on: return
        a=self.a
        a('s_memrealtime s[74:75]')
        a('s_memtime s[72:73]')
        a('s_waitcnt lgkmcnt(0)')
        a('s_mov_b32 s76, s72')
        self.n=1
    def mark(self, idx=None):
        if not self.on: return
        a=self.a
        i = self.n if idx is None else idx
        a('s_memtime s[72:73]')
        a('s_waitcnt lgkmcnt(0)')
        a(f's_mov_b32 s{76+i}, s72')
        self.n = i+1
    def flush_dbg(self, wave_sgpr, wg, wave):
        if not self.on: return
        a=self.a
        lab = a.newlabel('dbgskip')
        a(f's_cmp_lg_u32 s2, {wg}')
        a(f's_cbranch_scc1 {lab}')
        a(f's_cmp_lg_u32 s{wave_sgpr}, {wave}')
        a(f's_cbranch_scc1 {lab}')
        a('s_load_dwordx2 s[92:93], s[0:1], 64')
        a('s_memrealtime s[72:73]')
        a('s_waitcnt lgkmcnt(0)')
        a('s_sub_u32 s75, s72, s74')
        a('v_mov_b32 v250, 0')
        for i in range(1, 14):
            a(f's_sub_u32 s72, s{76+i}, s76')
            a(f'v_writelane_b32 v250, s72, {i}')
        a('v_writelane_b32 v250, s75, 14')
        a('s_mov_b32 s4, s92')
        a('s_and_b32 s5, s93, 0xffff')
        a('s_mov_b32 s6, 256')
        a('s_mov_b32 s7, 0x20000')
        a('v_and_b32 v251, 63, v0')
        a('v_lshlrev_b32 v251, 2, v251')
        a('s_mov_b64 exec, 0xffff')
        a('buffer_store_dword v250, v251, s[4:7], 0 offen')
        a('s_waitcnt vmcnt(0)')
        a('s_mov_b64 exec, -1')
        a.label(lab)
    def flush(self, wave_sgpr, ws_srd, base):
        if getattr(self, 'dbg', None):
            return self.flush_dbg(wave_sgpr, *self.dbg)
        if not self.on: return
        a=self.a
        a('s_memrealtime s[72:73]')
        a('s_waitcnt lgkmcnt(0)')
        a('s_mov_b32 s75, s72')
        a(f's_add_u32 s72, s2, {self.kidx*256}')
        a('s_lshl_b32 s72, s72, 3')
        a(f's_add_u32 s72, s72, s{wave_sgpr}')
        a('s_lshl_b32 s72, s72, 6')
        a(f's_add_u32 s72, s72, {base}')
        a('v_mov_b32 v250, 0')
        for i in range(16):
            a(f'v_writelane_b32 v250, s{74+i}, {i}')
        a('v_and_b32 v251, 63, v0')
        a('v_lshlrev_b32 v251, 2, v251')
        a('s_mov_b64 s[92:93], exec')
        a('s_mov_b64 exec, 0xffff')
        a(f'buffer_store_dword v250, v251, s[{ws_srd}:{ws_srd+3}], s72 offen')
        a('s_waitcnt vmcnt(0)')
        a('s_mov_b64 exec, s[92:93]')
```

```python
QF_OFF  = 0
KV_OFF  = 4 << 20
WOF_OFF = 12 << 20
OF_OFF  = 13 << 20
G_OFF   = 17 << 20
FLAG_OFF= (17 << 20) + (256 << 10)
FX_OFF  = FLAG_OFF
import os
FSH = int(os.environ.get('FSH', '7'))
FLG = 18 << 20
FA_OFF  = FLG
XID_OFF = FLG + (128 << 10)
FB_OFF  = FLG + (256 << 10)
FOA_OFF = FLG + (512 << 10)
FOB_OFF = FLG + (768 << 10)
ONESG_OFF = (17 << 20) + (512 << 10)
WS_USED = 19 << 20
C_SCALE = 0.25 * 1.4426950408889634
import struct
def f2u(x): return struct.unpack('<I', struct.pack('<f', x))[0]
```

```python
from asmlib import *
from layout import *

def srd(a, dst, base, size):
    a(f's_mov_b32 s{dst}, s{base}')
    a(f's_and_b32 s{dst+1}, s{base+1}, 0xffff')
    a(f's_mov_b32 s{dst+2}, {size}')
    a(f's_mov_b32 s{dst+3}, 0x20000')

RING = [0, 28672, 57344, 86016, 114688]
def slotaddr(s): return RING[s % 5]
GWL  = 143360
QSA  = 145408
QSB  = 153600
GST  = 161792
WOA_L = 0; WOB_L = 65536; SCRC = 65536; RSCR = 0
LDS_TOTAL = 163840

sX=20; sWA=24; sWS=28; sWB=32; sT=36
sWAVE=40; sHP=41; sTB=42; sH=43; sE=44; sK0=67
sLOC=64; sXCC=65
NEG = 0xf149f2ca
SPIN_MAX = 1 << 18
WS = f's[{sWS}:{sWS+3}]'

vKst=166; vVst=167; sST=70; vG=155; vRe=153; vVV=152; vL16=157; vFL=168; vNON=172; vZ=174; vL8=175; vVo=156; vWo=154; vT=158

def flag_store(a, soff, mod=' sc1'):
    a('s_mov_b64 exec, 1')
    a(f'buffer_store_dwordx2 {v(vNON,2)}, v{vZ}, {WS}, s{soff} offen{mod}')
    a('s_mov_b64 exec, -1')

_dual = [0]
def dual(lines_fmt):
    _dual[0] += 1
    lp, le = f'dualp_{_dual[0]}', f'duale_{_dual[0]}'
    return ([f's_cmp_lg_u32 s{sLOC}, 0', f's_cbranch_scc1 {lp}'] + [l + ' sc1' for l in lines_fmt] + [f's_branch {le}', lp + ':']
            + list(lines_fmt) + [le + ':'])

def blk(a, lines):
    if hasattr(a, 'block'): a.block(lines)
    else:
        for l in lines: a(l)

def emit_poll(a, name, voff, soff, first_issued=True, tmp=45):
    top = a.newlabel(name+'_poll'); ok = a.newlabel(name+'_ok')
    a(f's_mov_b32 s{tmp}, {SPIN_MAX}')
    if not first_issued:
        a(f's_branch {top}_ld')
    a.label(top)
    a(f'v_cmp_eq_u32 s[46:47], v{vNON}, v{vFL}')
    a(f'v_cmp_eq_u32 vcc, v{vNON+1}, v{vFL+1}')
    a('s_nop 1')
    a('s_and_b64 s[46:47], s[46:47], vcc')
    a('s_cmp_eq_u64 s[46:47], exec')
    a(f's_cbranch_scc1 {ok}')
    a(f's_sub_u32 s{tmp}, s{tmp}, 1')
    a(f's_cbranch_scc1 {ok}')
    a('s_sleep 1')
    a.label(top + '_ld')
    a(f'buffer_load_dwordx2 {v(vFL,2)}, v{voff}, {WS}, s{soff} offen sc1')
    a('s_waitcnt vmcnt(0)')
    a(f's_branch {top}')
    a.label(ok)

def mm(d, A, B, C):
    c = C if isinstance(C, str) else v(C, 16)
    return f'v_mfma_f32_32x32x16_bf16 {v(d,16)}, {v(A,4)}, {v(B,4)}, {c}'

def unit(a, s, p, mf, slots, pos=(0,6,11)):
    ci = 0; mi = 0
    for i in range(16):
        while mi < 3 and i == pos[mi]:
            if mf[mi] is not None: a(mf[mi])
            for x in slots[mi]:
                if isinstance(x, tuple): emit_poll(a, 'fbp', vL8, 59, tmp=48)
                else: a(x)
            mi += 1
        a(f'v_exp_f32 v{s+i}, v{s+i}')
        if i % 2 == 1 and i >= 3:
            a(f'v_cvt_pk_bf16_f32 v{p+ci}, v{s+2*ci}, v{s+2*ci+1}'); ci += 1
    a(f'v_cvt_pk_bf16_f32 v{p+7}, v{s+14}, v{s+15}')

VMASK = '0x0000ffff0000ffff'

def gen_v3(name, stamp=False, upto='all', opt=None):
    opt = opt or {}
    a = Asm()
    st = Stamps(a, stamp, 0)
    if opt.get('dbgwg') is not None: st.dbg = (opt['dbgwg'], opt.get('dbgwave', 4))
    WSZ = WS_USED + ((4<<20) if stamp else 0)
    a(f'.globl {name}')
    a('.p2align 8')
    a(f'.type {name},@function')
    a.label(name)
    end = name + '_end'
    a('s_cmp_ge_u32 s2, 256')
    a(f's_cbranch_scc1 {end}')
    st.start()
    a('s_load_dwordx4 s[4:7], s[0:1], 0')
    a('s_load_dwordx2 s[10:11], s[0:1], 72')
    a('s_load_dwordx4 s[12:15], s[0:1], 32')
    a('s_load_dwordx4 s[16:19], s[0:1], 48')
    a('s_load_dwordx2 s[8:9], s[0:1], 16')
    a('v_lshrrev_b32 v2, 6, v0')
    a('v_and_b32 v1, 63, v0')
    a(f'v_readfirstlane_b32 s{sWAVE}, v2')
    a('s_and_b32 s45, s2, 7')
    a('s_lshr_b32 s46, s2, 3')
    if opt.get('map16', 1):
        a(f's_and_b32 s{sTB}, s46, 15')
        a('s_lshl_b32 s47, s45, 1')
        a('s_lshr_b32 s48, s46, 4')
        a(f's_add_u32 s{sHP}, s47, s48')
    else:
        a('s_and_b32 s47, s45, 1')
        a('s_lshl_b32 s47, s47, 3')
        a('s_and_b32 s48, s46, 7')
        a(f's_add_u32 s{sTB}, s47, s48')
        a('s_lshr_b32 s47, s45, 1')
        a('s_lshl_b32 s47, s47, 2')
        a('s_lshr_b32 s48, s46, 3')
        a(f's_add_u32 s{sHP}, s47, s48')
    a(f's_lshr_b32 s{sE}, s{sWAVE}, 2')
    a(f's_lshl_b32 s{sH}, s{sHP}, 1')
    a(f's_add_u32 s{sH}, s{sH}, s{sE}')
    a(f's_and_b32 s45, s{sHP}, 3')
    a('s_lshl_b32 s45, s45, 1')
    a(f's_add_u32 s45, s45, s{sTB}')
    a(f's_and_b32 s{sK0}, s45, {7 if opt.get("rot", 1) else 0}')
    a('s_waitcnt lgkmcnt(0)')
    srd(a, sX, 4, 2048*1024)
    srd(a, sWA, 6, 512*3072)
    a(f's_cmp_ge_u32 s{sWAVE}, 4')
    a(f's_cbranch_scc1 {name}_loader')
    if opt.get('ldonly'): a('s_endpgm')

    def common_late():
        srd(a, sWS, 10, WSZ)
        a(f'v_mov_b32 v{vZ}, 0')
        a(f'v_lshlrev_b32 v{vL16}, 4, v1')
        a(f'v_lshlrev_b32 v{vL8}, {FSH}, v1')
        a(f's_mov_b32 s45, {FX_OFF}')
        a(f'buffer_load_dwordx2 {v(vNON,2)}, v{vZ}, {WS}, s45 offen sc1')
    def nonce_fix():
        a(f'v_add_co_u32 v{vNON}, vcc, 1, v{vNON}')
        a('s_nop 1')
        a(f'v_addc_co_u32 v{vNON+1}, vcc, 0, v{vNON+1}, vcc')

    pXA = [[8,9,10,11],[13,14,15,16],[18,19,20,21]]; pW = [12,17,22]; pGW = 23
    FR = 24
    aQ, aK, aV, aG = 104, 120, 136, 176
    bQ, bK, bV = 192, 208, 224
    if opt.get('prefetch', 0):
        srd(a, sWB, 12, 512*3072)
        a(f's_cmp_eq_u32 s{sWAVE}, 0')
        a(f's_cbranch_scc1 {name}_pfw')
        a(f's_and_b32 s45, s{sHP}, 3')
        a('s_lshl_b32 s45, s45, 5')
        a(f's_lshl_b32 s46, s{sTB}, 7')
        a('s_add_u32 s45, s45, s46')
        a('v_and_b32 v4, 31, v1')
        a('v_add_u32 v4, s45, v4')
        a('v_lshlrev_b32 v4, 10, v4')
        a('v_lshrrev_b32 v5, 5, v1')
        a('v_lshl_add_u32 v4, v5, 7, v4')
        a(f's_lshl_b32 s45, s{sWAVE}, 8')
        a(f'buffer_load_dword v240, v4, s[{sX}:{sX+3}], s45 offen')
        a(f's_branch {name}_pfd')
        a.label(name + '_pfw')
        a(f's_and_b32 s45, s{sHP}, 3')
        a('s_lshl_b32 s45, s45, 3')
        a(f's_and_b32 s46, s{sTB}, 7')
        a('s_add_u32 s45, s45, s46')
        a('s_mul_i32 s45, s45, 49152')
        a(f's_and_b32 s46, s{sHP}, 12')
        a('s_lshl_b32 s46, s46, 6')
        a('s_add_u32 s45, s45, s46')
        a('v_lshrrev_b32 v4, 2, v1')
        a('v_mul_u32_u24 v4, 3072, v4')
        a('v_bfe_u32 v5, v1, 1, 1')
        a('v_lshl_add_u32 v4, v5, 10, v4')
        a('v_and_b32 v5, 1, v1')
        a('v_lshl_add_u32 v4, v5, 7, v4')
        a('v_bfe_u32 v6, v1, 1, 4')
        a('v_mul_u32_u24 v6, 3072, v6')
        a('v_lshl_add_u32 v6, v5, 7, v6')
        a('v_add_u32 v6, 2048, v6')
        a(f'buffer_load_dword v240, v4, s[{sWA}:{sWA+3}], s45 offen')
        a(f'buffer_load_dword v241, v6, s[{sWA}:{sWA+3}], s45 offen')
        a(f'buffer_load_dword v242, v4, s[{sWB}:{sWB+3}], s45 offen')
        a(f'buffer_load_dword v243, v6, s[{sWB}:{sWB+3}], s45 offen')
        a.label(name + '_pfd')
    common_late()
    if opt.get('tlb', 1):
        lab = name + '_notlb'
        a(f's_cmp_lg_u32 s{sWAVE}, 3')
        a(f's_cbranch_scc1 {lab}')
        a('v_min_u32 v4, 9, v1')
        a('v_lshlrev_b32 v4, 21, v4')
        a(f'buffer_load_dword v244, v4, {WS}, 0 offen')
        srd(a, sWB, 12, 512*3072)
        a(f'buffer_load_dword v245, v{vZ}, s[{sWB}:{sWB+3}], 0 offen')
        srd(a, sT, 8, 512*1024)
        a(f'buffer_load_dword v246, v{vZ}, s[{sT}:{sT+3}], 0 offen')
        srd(a, sT, 14, 512*1024)
        a('s_nop 4')
        a(f'buffer_load_dword v247, v{vZ}, s[{sT}:{sT+3}], 0 offen')
        a.label(lab)
    a(f's_cmp_lg_u32 s{sWAVE}, 0')
    a(f's_cbranch_scc1 {name}_noones')
    for r in range(4): a(f'v_mov_b32 v{240+r}, 0x3f803f80')
    a('s_lshl_b32 s45, s2, 10')
    a(f's_add_u32 s45, s45, {ONESG_OFF}')
    a(f'buffer_store_dwordx4 v[240:243], v{vL16}, {WS}, s45 offen')
    a.label(name + '_noones')
    a('v_and_b32 v2, 31, v1')
    a('v_lshrrev_b32 v3, 5, v1')
    a(f's_lshl_b32 s45, s{sWAVE}, 5')
    a('v_add_u32 v4, s45, v2')
    a('v_bfe_u32 v5, v4, 1, 3')
    a('v_xor_b32 v5, v5, v3')
    a('v_lshlrev_b32 v5, 4, v5')
    a('v_lshl_add_u32 v8, v4, 7, v5')
    a('v_xor_b32 v9, 32, v8')
    a('v_xor_b32 v10, 64, v8')
    a('v_xor_b32 v11, 0x60, v8')
    a('v_bfe_u32 v4, v1, 2, 2')
    a('v_lshl_add_u32 v4, v3, 3, v4')
    a('v_lshlrev_b32 v4, 6, v4')
    a('v_bfe_u32 v5, v1, 4, 1')
    a('v_lshl_add_u32 v4, v5, 5, v4')
    a('v_and_b32 v5, 3, v1')
    a('v_lshl_add_u32 v4, v5, 3, v4')
    a('v_add_u32 v12, 16384, v4')
    for b in (1,2):
        off = RING[2*b]
        for kk in range(4): a(f'v_add_u32 v{pXA[b][kk]}, {off}, v{pXA[0][kk]}')
        a(f'v_add_u32 v{pW[b]}, {off}, v{pW[0]}')
    a(f'v_lshlrev_b32 v{pGW}, 4, v3')
    a(f's_lshl_b32 s45, s{sK0}, 7')
    a(f's_add_u32 s45, s45, {GWL}')
    a(f'v_add_u32 v{pGW}, s45, v{pGW}')
    q = DSQ(a)
    def fset(n): return FR + 20*(n & 3)
    def reads(n):
        s_, kk = divmod(n, 4)
        sa = slotaddr(s_)
        b = RING.index(sa) // 2
        rel = sa - RING[2*b]
        f = fset(n)
        out = [(f'ds_read_b128 {v(f,4)}, v{pXA[b][kk]} offset:{rel}', (n,'x'))]
        for g in range(3):
            o = rel + g*4096 + kk*1024
            out.append((f'ds_read_b64_tr_b16 {v(f+4+4*g,2)}, v{pW[b]} offset:{o}', (n,f'w{g}')))
            out.append((f'ds_read_b64_tr_b16 {v(f+6+4*g,2)}, v{pW[b]} offset:{o+256}', (n,f'w{g}')))
        if n < 32:
            out.append((f'ds_read_b128 {v(f+16,4)}, v{pGW} offset:{n*32}', (n,'g')))
        return out
    def pm(n, g):
        f = fset(n); x = f
        accs = (aQ,aK,aV,aG) if n < 32 else (bQ,bK,bV)
        d = accs[g]; first = n in (0, 32)
        c = '0' if first else d
        w = f+4+4*g
        if g == 2: return mm(d, x, w, c)
        return mm(d, w, x, c)
    def p_epilogue(br, a=a, q=q):
        Qa, Ka, Va = (aQ,aK,aV) if br == 0 else (bQ,bK,bV)
        T = 240
        a(f's_lshl_b32 s45, s{sHP}, 1')
        a(f's_add_u32 s45, s45, {br*32}')
        a('s_lshl_b32 s45, s45, 6')
        a(f's_lshl_b32 s46, s{sTB}, 2')
        a('s_add_u32 s45, s45, s46')
        a(f's_add_u32 s45, s45, s{sWAVE}')
        a('s_lshl_b32 s47, s45, 11')
        a(f's_add_u32 s47, s47, {KV_OFF}')
        a(f's_mov_b32 s48, {f2u(C_SCALE):#x}')
        a(f's_mov_b32 s49, {f2u(C_SCALE):#x}')
        TK = T if br == 0 else 8
        TV = T+8 if br == 0 else 16
        for i in range(8): a(f'v_cvt_pk_bf16_f32 v{TK+i}, v{Ka+2*i}, v{Ka+2*i+1}')
        if br == 0:
            a(f's_add_u32 s50, s47, 131072')
            blk(a, dual([f'buffer_store_dwordx4 {v(TK,4)}, v{vL16}, {WS}, s47 offen',
                         f'buffer_store_dwordx4 {v(TK+4,4)}, v{vL16}, {WS}, s50 offen']))
        a('v_bfe_u32 v4, v1, 4, 1')
        a('v_lshlrev_b32 v4, 17, v4')
        a('v_lshrrev_b32 v5, 5, v1')
        a('v_lshl_add_u32 v4, v5, 8, v4')
        a('v_and_b32 v5, 15, v1')
        a('v_lshl_add_u32 v4, v5, 4, v4')
        for i in range(8): a(f'v_cvt_pk_bf16_f32 v{TV+i}, v{Va+2*i}, v{Va+2*i+1}')
        if br == 0:
            blk(a, dual([f'buffer_store_dwordx4 {v(TV,4)}, v4, {WS}, s47 offen offset:1024',
                         f'buffer_store_dwordx4 {v(TV+4,4)}, v4, {WS}, s47 offen offset:1536']))
        else:
            a(f'v_mov_b32 v{vVst}, v4')
            a(f'v_mov_b32 v{vKst}, v{vL16}')
            a(f's_mov_b32 s{sST}, s47')
            a(f's_add_u32 s{sST+1}, s47, 131072')
        for i in range(8): a(f'v_pk_mul_f32 {v(Qa+2*i,2)}, {v(Qa+2*i,2)}, s[48:49]')
        for i in range(8): a(f'v_cvt_pk_bf16_f32 v{Ka+i}, v{Qa+2*i}, v{Qa+2*i+1}')
        a(f's_lshl_b32 s45, s{sWAVE}, 10')
        a(f's_add_u32 s45, s45, {QSA if br == 0 else QSB}')
        a(f'v_add_u32 v4, s45, v{vL16}')
        q.issue(f'ds_write_b128 v4, {v(Ka,4)}', ('qs',br,0))
        q.issue(f'ds_write_b128 v4, {v(Ka+4,4)} offset:4096', ('qs',br,1))
        if br == 0:
            g = Va
            a(f'v_cvt_pk_bf16_f32 v{g}, v{aG}, v{aG}')
            a(f'v_lshlrev_b32 v{g}, 16, v{g}')
            a(f'v_mul_f32 v{g}, 0xbfb8aa3b, v{g}')
            a(f'v_exp_f32 v{g}, v{g}')
            a('s_nop 0')
            a(f'v_add_f32 v{g}, 1.0, v{g}')
            a(f'v_rcp_f32 v{g}, v{g}')
            a('s_nop 0')
            a(f'v_cvt_pk_bf16_f32 v{g}, v{g}, v{g}')
            a(f'v_lshlrev_b32 v{g}, 16, v{g}')
            a(f's_lshl_b32 s45, s{sWAVE}, 7')
            a(f's_add_u32 s45, s45, {GST}')
            a('v_and_b32 v5, 31, v1')
            a('v_lshlrev_b32 v5, 2, v5')
            a('v_add_u32 v5, s45, v5')
            q.issue(f'ds_write_b32 v5, v{g}', ('gs',))
    def pflag(off):
        a(f's_lshl_b32 s45, s{sHP}, 4')
        a(f's_add_u32 s45, s45, s{sTB}')
        a('s_lshl_b32 s45, s45, 2')
        a(f's_add_u32 s45, s45, s{sWAVE}')
        a(f's_lshl_b32 s45, s45, {FSH}')
        a(f's_add_u32 s45, s45, {off}')
        a('s_mov_b64 exec, 1')
        for l in dual([f'buffer_store_dwordx2 {v(vNON,2)}, v{vZ}, {WS}, s45 offen']): a(l)
        a('s_mov_b64 exec, -1')
    a('s_barrier')
    st.mark(1)
    for n in (0, 1):
        for line, tag in reads(n): q.issue(line, tag)
    NST = 64
    FA_STEP = opt.get('fa_step', 50)
    EPI_PER_STEP = opt.get('epi', 10)
    epi = []
    class Rec:
        def __call__(self, line): epi.append(('i', line))
        def block(self, lines): epi.append(('b', lines))
    class RecQ:
        def issue(self, line, tag): epi.append(('q', line, tag))
    p_epilogue(0, Rec(), RecQ())
    for n in range(NST):
        s_, kk = divmod(n, 4)
        if kk == 2 and s_ < 15:
            q.waitall()
            a('s_barrier')
            if opt.get('pdbg'):
                if s_ >= 7: st.mark(s_ - 5)
            elif s_ in (3, 7, 11): st.mark({3:2, 7:3, 11:4}[s_])
        rd = reads(n+2) if n+2 < NST else []
        ng = 4 if n < 32 else 3
        ri = 0
        q.wait([(n,t) for t in ('x','w0','w1','w2','g')])
        for g in range(ng):
            a(pm(n, g))
            k = 3 if g < 2 else 2
            for _ in range(k):
                if ri < len(rd):
                    q.issue(*rd[ri]); ri += 1
        while ri < len(rd):
            q.issue(*rd[ri]); ri += 1
        if n == opt.get('wbpf', 8) and opt.get('wbpf', 8) >= 0:
            lab = name + '_wbpf'
            a(f's_cmp_lg_u32 s{sWAVE}, 1')
            a(f's_cbranch_scc1 {lab}')
            srd(a, sWB, 12, 512*3072)
            a(f's_and_b32 s45, s{sHP}, 3')
            a('s_lshl_b32 s45, s45, 3')
            a(f's_and_b32 s46, s{sTB}, 7')
            a('s_add_u32 s45, s45, s46')
            a('s_mul_i32 s45, s45, 49152')
            a(f's_and_b32 s46, s{sHP}, 12')
            a('s_lshl_b32 s46, s46, 6')
            a('s_add_u32 s45, s45, s46')
            a('v_lshrrev_b32 v4, 2, v1')
            a('v_mul_u32_u24 v4, 3072, v4')
            a('v_bfe_u32 v5, v1, 1, 1')
            a('v_lshl_add_u32 v4, v5, 10, v4')
            a('v_and_b32 v5, 1, v1')
            a('v_lshl_add_u32 v4, v5, 7, v4')
            a('v_bfe_u32 v6, v1, 1, 4')
            a('v_mul_u32_u24 v6, 3072, v6')
            a('v_lshl_add_u32 v6, v5, 7, v6')
            a('v_add_u32 v6, 2048, v6')
            a(f'buffer_load_dword v242, v4, s[{sWB}:{sWB+3}], s45 offen')
            a(f'buffer_load_dword v243, v6, s[{sWB}:{sWB+3}], s45 offen')
            a.label(lab)
        if n == 16:
            a('s_waitcnt vmcnt(0)')
            nonce_fix()
            a(f's_getreg_b32 s{sXCC}, hwreg(HW_REG_XCC_ID, 0, 4)')
            if opt.get('forceglobal'): a(f's_add_u32 s{sXCC}, s{sXCC}, s{sTB}'); a(f's_and_b32 s{sXCC}, s{sXCC}, 15')
            lab = name + '_noxid'
            a(f's_cmp_lg_u32 s{sWAVE}, 2')
            a(f's_cbranch_scc1 {lab}')
            a(f'v_mov_b32 v4, v{vNON}')
            a(f'v_and_b32 v5, 0x0fffffff, v{vNON+1}')
            a(f's_lshl_b32 s45, s{sXCC}, 28')
            a('v_or_b32 v5, s45, v5')
            a(f's_lshl_b32 s45, s{sHP}, 4')
            a(f's_add_u32 s45, s45, s{sTB}')
            a('s_lshl_b32 s45, s45, 7')
            a(f's_add_u32 s45, s45, {XID_OFF}')
            a('s_mov_b64 exec, 1')
            a(f'buffer_store_dwordx2 v[4:5], v{vZ}, {WS}, s45 offen sc1')
            a('s_mov_b64 exec, -1')
            a.label(lab)
        if n == 28:
            a('v_min_u32 v6, 15, v1')
            a('v_lshlrev_b32 v6, 7, v6')
            a(f's_lshl_b32 s59, s{sHP}, 11')
            a(f's_add_u32 s59, s59, {XID_OFF}')
            a(f'buffer_load_dwordx2 {v(vFL,2)}, v6, {WS}, s59 offen sc1')
        if n == 32:
            top = name + '_xid'; ok = name + '_xidok'; bad = name + '_xidbad'
            a('s_waitcnt vmcnt(0)')
            a(f's_mov_b32 s48, {SPIN_MAX}')
            a.label(top)
            a(f'v_and_b32 v4, 0x0fffffff, v{vFL+1}')
            a(f'v_and_b32 v5, 0x0fffffff, v{vNON+1}')
            a(f'v_cmp_eq_u32 s[46:47], v{vNON}, v{vFL}')
            a('v_cmp_eq_u32 vcc, v4, v5')
            a('s_nop 1')
            a('s_and_b64 s[46:47], s[46:47], vcc')
            a('s_cmp_eq_u64 s[46:47], exec')
            a(f's_cbranch_scc1 {ok}')
            a('s_sub_u32 s48, s48, 1')
            a(f's_cbranch_scc1 {bad}')
            a('s_sleep 1')
            a(f'buffer_load_dwordx2 {v(vFL,2)}, v6, {WS}, s59 offen sc1')
            a('s_waitcnt vmcnt(0)')
            a(f's_branch {top}')
            a.label(bad)
            a(f's_mov_b32 s{sLOC}, 0')
            a(f's_branch {name}_xiddone')
            a.label(ok)
            a(f'v_lshrrev_b32 v4, 28, v{vFL+1}')
            a(f'v_cmp_eq_u32 vcc, s{sXCC}, v4')
            a('s_nop 1')
            a('s_cmp_eq_u64 vcc, exec')
            a(f's_cselect_b32 s{sLOC}, 1, 0')
            a.label(name + '_xiddone')
        if n >= 33 and epi:
            k = EPI_PER_STEP
            while k > 0 and epi:
                x = epi.pop(0)
                if x[0] == 'i':
                    a(x[1])
                    if x[1].startswith('v_') or x[1].startswith('buffer'): k -= 1
                elif x[0] == 'b':
                    for l in x[1]: a(l)
                    k -= 2
                else: q.issue(x[1], x[2])
            if not epi and opt.get('pdbg'): st.mark(11)
        if n == FA_STEP:
            if opt.get('pdbg'): st.mark(12)
            a('s_waitcnt vmcnt(0)')
            if opt.get('pdbg'): st.mark(13)
            pflag(FA_OFF)
    if opt.get('pdbg'):
        st.flush(sWAVE, sWS, WS_USED); st.on = False
    st.mark(5)
    a('s_barrier')
    from v3_attn import emit_first
    class G0: pass
    g0 = G0(); g0.a = a; g0.st = st; g0.name = name + '_c'; g0.opt = opt
    emit_first(g0)
    p_epilogue(1)
    a(f's_branch {name}_attn')

    a.label(name + '_loader')
    a(f's_sub_u32 s50, s{sWAVE}, 4')
    a('v_lshrrev_b32 v2, 3, v1')
    a('v_and_b32 v3, 7, v1')
    a('v_lshrrev_b32 v4, 1, v2')
    a('v_xor_b32 v5, v3, v4')
    a(f's_lshl_b32 s52, s{sTB}, 7')
    a('s_lshl_b32 s53, s50, 5')
    a('s_add_u32 s52, s52, s53')
    a('v_add_u32 v6, s52, v2')
    a('v_lshlrev_b32 v6, 10, v6')
    a('v_lshl_add_u32 v8, v5, 4, v6')
    a('v_add_u32 v9, 0x2000, v8')
    a('v_xor_b32 v9, 64, v9')
    a('v_add_u32 v10, 0x4000, v8')
    a('v_add_u32 v11, 0x4000, v9')
    a('v_lshrrev_b32 v5, 2, v1')
    a('s_lshl_b32 s53, s50, 4')
    a('v_add_u32 v5, s53, v5')
    a('v_mul_u32_u24 v5, 3072, v5')
    a('v_and_b32 v6, 3, v1')
    a('v_lshl_add_u32 v5, v6, 4, v5')
    a(f's_lshl_b32 s53, s{sHP}, 6')
    a('v_add_u32 v12, s53, v5')
    a('s_lshl_b32 s54, s50, 12')
    a('s_lshl_b32 s55, s50, 10')
    a('s_add_u32 s55, s55, 16384')
    def nx(s_): return 3 if 8 <= s_ <= 12 else 7
    def stage(s_):
        sa = slotaddr(s_)
        ks = s_ if s_ < 8 else (s_ - 5 if s_ <= 12 else s_ - 13)
        wsrd = sWA if s_ < 8 else sWB
        a(f's_add_u32 s57, s{sK0}, {ks}')
        a('s_and_b32 s57, s57, 7')
        a('s_lshl_b32 s56, s57, 7')
        a('s_mul_i32 s57, s57, 196608')
        if nx(s_) == 7 and opt.get('only') != 2:
            for qq in range(4):
                a(f's_add_u32 m0, s54, {sa+qq*1024}')
                a('s_nop 0')
                a(f'buffer_load_dwordx4 v{8+qq}, s[{sX}:{sX+3}], s56 offen lds')
        for g in range(3 if opt.get('only') != 1 else 0):
            a(f's_add_u32 m0, s55, {sa+g*4096}')
            if g: a('s_add_u32 s57, s57, 1024')
            else: a('s_nop 0')
            wm_ = {0:'',1:' sc1',2:' nt',3:' sc0',4:' sc0 sc1', 5:' sc1 nt'}[opt.get('wmod', 0)]
            a(f'buffer_load_dwordx4 v12, s[{wsrd}:{wsrd+3}], s57 offen{wm_} lds')
    stage(0)
    srd(a, sT, 16, 1024)
    a('v_lshlrev_b32 v13, 4, v1')
    a('s_and_b32 s45, s50, 1')
    a('s_lshl_b32 s45, s45, 10')
    a(f's_add_u32 m0, s45, {GWL}')
    a('s_nop 0')
    a(f'buffer_load_dwordx4 v13, s[{sT}:{sT+3}], 0 offen lds')
    stage(1)
    srd(a, sWB, 12, 512*3072)
    common_late()
    st.mark(1)
    if opt.get('ldonly'):
        depth = opt['ldonly']
        iss = [0, 1]
        for t in range(2, 16):
            if len(iss) >= depth:
                i0 = len(iss) - depth
                n = sum(nx(u) for u in iss[i0+1:])
                a(f's_waitcnt vmcnt({min(n,63)})')
            stage(t); iss.append(t)
            if t in (3, 7, 11): st.mark({3:2, 7:3, 11:4}[t])
        st.mark(5)
        a('s_waitcnt vmcnt(0)')
        st.mark(6)
        st.flush(sWAVE, sWS, WS_USED)
        a('s_endpgm')
    issued = [0, 1, 'n']
    def wait_for(s_):
        i0 = issued.index(s_)
        n = sum((1 if t == 'n' else nx(t)) for t in issued[i0+1:])
        a(f's_waitcnt vmcnt({n})')
    def issue(t):
        stage(t); issued.append(t)
    D0 = opt.get('d0', 2)
    for t in range(2, D0): issue(t)
    wait_for(0); a('s_barrier')
    for t in range(D0, 4 if D0 <= 4 else D0): issue(t)
    wait_for(1); a('s_barrier')
    for t in range(max(4, D0), 6): issue(t)
    for s_ in range(2, 12):
        wait_for(s_); a('s_barrier')
        if s_ == 2: nonce_fix()
        issue(s_+4)
        if s_ in (3, 7): st.mark({3:2, 7:3}[s_])
    st.mark(4)
    for s_ in (12, 13, 14):
        wait_for(s_); a('s_barrier')
    a(f's_lshl_b32 s59, s{sHP}, {6+FSH}')
    a(f's_add_u32 s59, s59, {FA_OFF}')
    a(f'buffer_load_dwordx2 {v(vFL,2)}, v{vL8}, {WS}, s59 offen sc1')
    a('s_waitcnt vmcnt(1)'); a('s_barrier')
    a('s_waitcnt vmcnt(0)')
    emit_poll(a, name+'_fa', vL8, 59)
    st.mark(5)
    from v3_attn import emit_attn, emit_first
    class G: pass
    g_ = G(); g_.a = a; g_.st = st; g_.name = name; g_.end = end; g_.upto = upto; g_.stamp = stamp; g_.opt = opt
    g_.p_epilogue = p_epilogue; g_.pflag = pflag; g_.q = q
    emit_first(g_)
    a(f'v_mov_b32 v{vVst}, 0x40000000')
    a(f'v_mov_b32 v{vKst}, 0x40000000')
    a(f's_mov_b32 s{sST}, 0')
    a(f's_mov_b32 s{sST+1}, 0')
    a(f's_mov_b32 s{sLOC}, 0')
    a('s_barrier')
    a.label(name + '_attn')
    emit_attn(g_)
    a.label(end)
    a('s_endpgm')
    return a.text(), dict(name=name, vgpr=256, sgpr=96, lds=LDS_TOTAL, block=512, grid=256)
```

```python
from asmlib import *
from layout import *
from v3 import *

KA = [24,28,32,36]; VA = [40,48,56,64]
QA = [72,76,80,84]
S = [88,104]; P = [120,128]
O = [136,176,192,208]
CF = 224; CL = 240
KBx = {4:216,5:220,6:72,7:76,8:80}; VBx = {4:176,5:184,6:192,7:200,8:208}
def KB(i): return KA[i] if i < 4 else KBx[i]
def VB(i): return VA[i] if i < 4 else VBx[i]
QB = 8
BT = 0; SCRC4 = 49152; ONESB = 162304
WA0 = 49152; WB0 = 114688; WB1 = 0; RS = 49152
vKa = 158; vVa = 159; vVs = 160

sKQ=51; sKV=52; sKB=53; sGT=54; sN=55; sIT=56; sFO=57; sOB=58; sCB=60; sTT=61; sCT=62; sKH=63; sOO=66; sKV0=68; sKVE=69; sBT0=49; sBD=50; sPOL=48; sSA=49; sDA=50; sSB=70; sDB=71; sCA=52; sCB2=53
def v_addr(soff): return f'v_mad_u32_u24 v{vVV}, s{soff}, v{vRe}, v{vVo}'
def k_load(kreg, soff): return f'buffer_load_dwordx4 {v(kreg,4)}, v{vL16}, {WS}, s{soff} offen sc1'
def v_load(vreg, u): return f'buffer_load_dwordx4 {v(vreg+4*u,4)}, v{vVV}, {WS}, 0 offen offset:{512*u} sc1'
def tile_loads(kreg, vreg, soff):
    return [v_addr(soff), k_load(kreg, soff), v_load(vreg, 0), v_load(vreg, 1)]
def adv(): return [f's_add_u32 s{sKV}, s{sKV}, 2048', f's_cmp_eq_u32 s{sKV}, s{sKVE}', f's_cselect_b32 s{sKV}, s{sKV0}, s{sKV}']

def emit_first(g):
    a = g.a
    a(f's_and_b32 s{sKQ}, s{sWAVE}, 3')
    a('v_lshrrev_b32 v3, 5, v1')
    a('v_and_b32 v4, 15, v1')
    a('v_lshlrev_b32 v4, 4, v4')
    a('v_lshl_add_u32 v5, v3, 8, v4')
    a('v_add_u32 v5, 1024, v5')
    a('s_lshl_b32 s45, s2, 10')
    a(f's_add_u32 s45, s45, {ONESG_OFF}')
    a('v_add_u32 v4, s45, v4')
    a('v_bfe_u32 v6, v1, 4, 1')
    a(f'v_xor_b32 v{vRe}, 1, v6')
    a(f'v_mul_u32_u24 v5, v5, v{vRe}')
    a('v_sub_u32 v6, 0, v6')
    a('v_and_b32 v4, v4, v6')
    a(f'v_add_u32 v{vVo}, v4, v5')
    a(f's_lshl_b32 s45, s{sH}, 6')
    a(f's_lshl_b32 s46, s{sKQ}, 4')
    a('s_add_u32 s45, s45, s46')
    a('s_lshl_b32 s45, s45, 11')
    a(f's_add_u32 s{sKV0}, s45, {KV_OFF}')
    a(f's_add_u32 s{sKVE}, s{sKV0}, 32768')
    a(f's_and_b32 s45, s{sTB}, 7')
    a('s_lshl_b32 s45, s45, 12')
    a(f's_add_u32 s{sKV}, s{sKV0}, s45')
    for t in range(2):
        if t:
            for x in adv(): a(x)
        for x in tile_loads(KA[t], VA[t], sKV): a(x)
    g.st.mark(6)

def emit_attn(g):
    a = g.a; st = g.st; name = g.name; end = g.end; opt = g.opt
    def emit(l):
        for x in l: a(x)
    for y in range(4):
        a(f's_add_u32 s45, s{sKQ}, {y}')
        a('s_and_b32 s45, s45, 3')
        a(f's_lshl_b32 s46, s{sE}, 2')
        a('s_add_u32 s45, s45, s46')
        a('s_lshl_b32 s45, s45, 10')
        a(f's_add_u32 s45, s45, {QSA}')
        a(f'v_add_u32 v4, s45, v{vL16}')
        a(f'ds_read_b128 {v(QA[y],4)}, v4')
    a('v_and_b32 v2, 31, v1')
    a(f's_lshl_b32 s45, s{sKQ}, 7')
    a(f's_add_u32 s45, s45, {GST}')
    a('v_lshlrev_b32 v4, 2, v2')
    a('v_add_u32 v4, s45, v4')
    a(f'ds_read_b32 v{vG}, v4')
    a(f's_lshl_b32 s45, s{sTB}, 2')
    a(f's_add_u32 s{sGT}, s45, s{sKQ}')
    a(f's_add_u32 s45, s{sH}, 32')
    a('s_lshl_b32 s45, s45, 17')
    a(f's_add_u32 s{sKB}, s45, {KV_OFF}')
    a(f's_min_u32 s{sN}, s{sGT}, 8')
    a(f's_add_u32 s{sN}, s{sN}, 1')
    a(f's_lshl_b32 s45, s{sTB}, 2')
    a(f's_mul_i32 s46, s{sKQ}, 3')
    a('s_add_u32 s45, s45, s46')
    a(f's_sub_u32 s{sBT0}, s45, 8')
    a(f's_mul_i32 s45, s{sE}, 12')
    a('s_add_u32 s45, s45, s46')
    a(f's_lshl_b32 s{sBD}, s45, 11')
    emit(adv()); emit(tile_loads(KA[2], VA[2], sKV))
    a('s_waitcnt vmcnt(6) lgkmcnt(0)')
    a(mm(S[0], KA[0], QA[0], '0'))
    a('s_nop 7')
    a('s_nop 3')
    st.mark(7)
    def body(last, first=False):
        for k in range(4):
            for y in range(4):
                u = 4*k + y
                tn, yn = divmod(u+1, 4); tp, yp = divmod(u-1, 4)
                c0 = '0' if (first and u >= 1 and u <= 4) else O[yp]
                mf = [mm(S[(u+1)&1], KA[tn&3], QA[yn], '0'),
                      mm(O[yp], VA[tp&3], P[(u-1)&1], c0), mm(O[yp], VA[tp&3]+4, P[(u-1)&1]+4, O[yp])]
                if first and u == 0: mf[1] = mf[2] = None
                if last and u == 15: mf[0] = None
                sl = [[], [], []]
                b = (k+3) & 3
                bt = last and k >= 1
                if not bt:
                    if y == 0:
                        ad = adv(); sl[1] = [ad[0]]; sl[2] = ad[1:]
                    if y == 1:
                        sl[0] = [v_addr(sKV)]; sl[1] = [k_load(KA[b], sKV)]; sl[2] = [v_load(VA[b], 0)]
                    if y == 2:
                        sl[0] = [v_load(VA[b], 1)]; sl[2] = ['s_waitcnt vmcnt(6)']
                else:
                    if y == 0:
                        sl[0] = [f's_add_i32 s45, s{sBT0}, {k-1}']; sl[1] = ['s_max_i32 s45, s45, 0', 's_lshl_b32 s45, s45, 11']
                        sl[2] = [f's_add_u32 s45, s45, s{sKB}', f's_add_u32 m0, s{sBD}, {(k-1)*2048}']
                    if y == 1:
                        sl[1] = [f'buffer_load_dwordx4 v{vL16}, {WS}, s45 offen sc1 lds']
                        sl[2] = [f'buffer_load_dwordx4 v{vL16}, {WS}, s45 offen offset:1024 sc1 lds']
                    if y == 2 and k == 2: sl[2] = ['s_waitcnt vmcnt(4)']
                if y == 3 and first:
                    st_ = [f'buffer_store_dwordx4 v[8:11], v{vKst}, {WS}, s{sST} offen',
                           f'buffer_store_dwordx4 v[12:15], v{vKst}, {WS}, s{sST+1} offen',
                           f'buffer_store_dwordx4 v[16:19], v{vVst}, {WS}, s{sST} offen offset:1024',
                           f'buffer_store_dwordx4 v[20:23], v{vVst}, {WS}, s{sST} offen offset:1536']
                    sl[1] = dual([st_[k]])
                if y == 3 and last and k == 0:
                    sl[2] = ['s_waitcnt vmcnt(3)', ('poll',)]
                unit(a, S[u&1], P[u&1], mf, sl)
    if opt.get('prio',1): a('s_setprio 3')
    body(False, first=True)
    if opt.get('prio',1): a('s_setprio 2')
    adbg = opt.get('adbg', 0)
    if adbg: st.mark(8)
    srd(a, sWA, 8, 512*1024)
    srd(a, sWB, 14, 512*1024)
    a('v_lshrrev_b32 v6, 3, v1')
    a('v_bfe_u32 v7, v1, 4, 1')
    a('v_lshlrev_b32 v7, 2, v7')
    a(f'v_and_b32 v{vWo}, 7, v1')
    a(f'v_xor_b32 v{vWo}, v{vWo}, v7')
    a(f'v_lshlrev_b32 v{vWo}, 4, v{vWo}')
    a(f'v_lshl_add_u32 v{vWo}, v6, 10, v{vWo}')
    a('s_lshr_b32 s45, s2, 5')
    a('s_lshl_b32 s45, s45, 7')
    a(f'v_add_u32 v{vWo}, s45, v{vWo}')
    def wo_dma(br, h0, nh, dst):
        sr = sWA if br == 0 else sWB
        n = nh*2//8
        a(f's_mul_i32 s45, s{sWAVE}, {n*8192}')
        a(f's_add_u32 s45, s45, {h0*16*1024}')
        a(f's_mul_i32 s46, s{sWAVE}, {n*1024}')
        for i in range(n):
            a(f's_add_u32 m0, s46, {dst + i*1024}')
            if i: a('s_add_u32 s45, s45, 8192')
            else: a('s_nop 0')
            a(f'buffer_load_dwordx4 v{vWo}, s[{sr}:{sr+3}], s45 offen lds')
    a(f's_cmp_lg_u32 s{sWAVE}, 0')
    a(f's_cbranch_scc1 {name}_no1')
    for r in range(4): a(f'v_mov_b32 v{vT+2+r}, 0x3f803f80')
    a(f'v_add_u32 v4, {ONESB}, v{vL16}')
    a(f'ds_write_b128 v4, {v(vT+2,4)}')
    a.label(name + '_no1')
    if adbg: st.mark(9)
    a(f's_mov_b32 s{sIT}, 0')
    loop = name + '_aloop'
    a('.p2align 6')
    a.label(loop)
    body(False)
    a(f's_cmp_lg_u32 s{sIT}, 0')
    a(f's_cbranch_scc1 {name}_h2')
    if opt.get('wopf', 1):
        lab = a.newlabel(name + '_wpf')
        a(f's_cmp_ge_u32 s{sWAVE}, 4')
        a(f's_cbranch_scc1 {lab}')
        a('s_bfe_u32 s45, s2, 0x20003')
        a('s_lshl_b32 s45, s45, 2')
        a(f's_add_u32 s45, s45, s{sWAVE}')
        a('s_lshr_b32 s46, s2, 5')
        a('s_lshl_b32 s46, s46, 7')
        a('v_lshlrev_b32 v4, 10, v1')
        a('v_add_u32 v4, s46, v4')
        a('s_and_b32 s46, s45, 7')
        a('s_lshl_b32 s46, s46, 16')
        a('s_cmp_ge_u32 s45, 8')
        a(f's_cbranch_scc1 {lab}_b')
        a(f'buffer_load_dword v{vT}, v4, s[{sWA}:{sWA+3}], s46 offen')
        a(f's_branch {lab}')
        a.label(lab + '_b')
        a(f'buffer_load_dword v{vT}, v4, s[{sWB}:{sWB+3}], s46 offen')
        a.label(lab)
    if adbg: st.mark(10)
    a(f's_mov_b32 s{sIT}, 1')
    if opt.get('prio',1): a('s_setprio 1')
    a(f's_cmp_ge_u32 s{sWAVE}, 4')
    a(f's_cbranch_scc1 {loop}')
    g.pflag(FB_OFF)
    a(f's_branch {loop}')
    a.label(name + '_h2')
    if adbg: st.mark(11)
    a(f's_lshl_b32 s59, s{sHP}, {6+FSH}')
    a(f's_add_u32 s59, s59, {FB_OFF}')
    a(f'buffer_load_dwordx2 {v(vFL,2)}, v{vL8}, {WS}, s59 offen sc1')
    if opt.get('prio',1): a('s_setprio 0')
    body(True)
    if adbg:
        st.mark(12); st.flush(sWAVE, sWS, WS_USED); st.on = False
    st.mark(8)
    a('s_nop 0')
    a(mm(O[3], VA[3], P[1], O[3]))
    a(mm(O[3], VA[3]+4, P[1]+4, O[3]))
    a('v_lshlrev_b32 v3, 2, v1')
    for y in (1,2,3):
        a(f's_add_u32 s45, s{sKQ}, {y}')
        a('s_and_b32 s45, s45, 3')
        a(f's_lshl_b32 s46, s{sE}, 2')
        a('s_add_u32 s45, s45, s46')
        a('s_mul_i32 s45, s45, 6912')
        a(f's_add_u32 s45, s45, {SCRC4 + (y-1)*2304}')
        a(f'v_add_u32 v4, s45, v{vL16}')
        a('v_add_u32 v5, s45, v3')
        if y == 3: a('s_nop 3')
        a(f'ds_write_b128 v4, {v(O[y],4)}')
        a(f'ds_write_b128 v4, {v(O[y]+4,4)} offset:1024')
        a(f'ds_write_b32 v5, v{O[y]+8} offset:2048')
    a('v_and_b32 v2, 31, v1')
    a('v_lshrrev_b32 v7, 5, v1')
    a(f's_mul_i32 s45, s{sE}, 12')
    a(f's_add_u32 s45, s45, s{sKQ}')
    a('s_lshl_b32 s45, s45, 11')
    a(f'v_add_u32 v{vKa}, s45, v{vL16}')
    a('v_and_b32 v4, 15, v1')
    a('v_lshlrev_b32 v4, 4, v4')
    a('v_lshl_add_u32 v5, v7, 8, v4')
    a(f's_add_u32 s45, s45, {8*2048 + 1024}')
    a('v_add_u32 v5, s45, v5')
    a(f'v_add_u32 v4, {ONESB}, v4')
    a(f'v_mul_u32_u24 v5, v5, v{vRe}')
    a(f'v_xor_b32 v6, 1, v{vRe}')
    a('v_mul_u32_u24 v4, v4, v6')
    a(f'v_add_u32 v{vVa}, v4, v5')
    a(f'v_lshlrev_b32 v{vVs}, 11, v{vRe}')
    a('v_lshlrev_b32 v6, 2, v7')
    a('v_sub_u32 v6, v2, v6')
    a(f's_mov_b32 s45, {NEG:#x}')
    for r in range(16):
        b = (r & 3) + 8*(r >> 2)
        a(f'v_subrev_u32 v7, {b}, v6')
        a('v_ashrrev_i32 v7, 31, v7')
        a(f'v_and_b32 v{CL+r}, s45, v7')
        a(f'v_xor_b32 v{CF+r}, s45, v{CL+r}')
    a(f's_lshl_b32 s45, s{sWAVE}, 10')
    a(f's_add_u32 s45, s45, {QSB}')
    a(f'v_add_u32 v4, s45, v{vL16}')
    a('s_waitcnt vmcnt(0) lgkmcnt(0)')
    a('s_barrier')
    def kB(i): return f'ds_read_b128 {v(KA[i&1],4)}, v{vKa} offset:{(8-i)*2048}'
    def vB(i, u): return f'ds_read_b128 {v(VA[i&1]+4*u,4)}, v{vVa} offset:{u*512}'
    a(f'ds_read_b128 {v(QB,4)}, v4')
    a(kB(0)); a(kB(1))
    a(f's_mul_i32 s45, s{sWAVE}, 6912')
    a(f's_add_u32 s45, s45, {SCRC4}')
    a(f'v_add_u32 v4, s45, v{vL16}')
    a('v_add_u32 v5, s45, v3')
    R = [88+16, 88+16+12, 120+12]
    R = [176, 192, 208]
    for i in range(3):
        a(f'ds_read_b128 {v(R[i],4)}, v4 offset:{i*2304}')
        a(f'ds_read_b128 {v(R[i]+4,4)}, v4 offset:{i*2304+1024}')
        a(f'ds_read_b32 v{R[i]+8}, v5 offset:{i*2304+2048}')
    a('s_waitcnt lgkmcnt(9)')
    a(mm(S[0], KA[0], QB, CL))
    a('s_waitcnt lgkmcnt(0)')
    for i in range(3):
        for r in range(9): a(f'v_add_f32 v{O[0]+r}, v{O[0]+r}, v{R[i]+r}')
    TT = 161
    a(f'v_rcp_f32 v{TT+1}, v{O[0]+8}')
    a('s_nop 0')
    a(f'v_mul_f32 v{TT}, v{vG}, v{TT+1}')
    for r in range(8): a(f'v_mul_f32 v{O[0]+r}, v{O[0]+r}, v{TT}')
    PK = 164
    for r in range(4): a(f'v_cvt_pk_bf16_f32 v{PK+r}, v{O[0]+2*r}, v{O[0]+2*r+1}')
    a(f's_lshl_b32 s45, s{sGT}, 5')
    a(f's_add_u32 s45, s45, s{sH}')
    a(f's_lshl_b32 s46, s45, {FSH}')
    a(f's_add_u32 s{sFO}, s46, {FOA_OFF}')
    a('s_lshl_b32 s45, s45, 10')
    a(f's_add_u32 s{sOO}, s45, {OF_OFF}')
    a(f'buffer_store_dwordx4 {v(PK,4)}, v{vL16}, {WS}, s{sOO} offen sc1')
    a(f's_lshl_b32 s{sSA}, s{sWAVE}, 16')
    a(f's_lshl_b32 s{sDA}, s{sWAVE}, 13')
    a(f's_add_u32 s{sDA}, s{sDA}, {WA0}')
    a(f's_lshl_b32 s{sSB}, s{sWAVE}, 15')
    a(f's_lshl_b32 s{sDB}, s{sWAVE}, 12')
    a(f's_add_u32 s{sDB}, s{sDB}, {WB0}')
    a(f's_mov_b32 s{sCA}, 8')
    a(f's_mov_b32 s{sCB2}, 4')
    a('s_barrier')
    st.mark(9)
    if g.upto == 'A':
        a('s_waitcnt vmcnt(0)'); st.flush(sWAVE, sWS, WS_USED); a('s_endpgm'); return
    a('s_and_b32 s45, s2, 7')
    a('s_lshl_b32 s45, s45, 2')
    a('s_bfe_u32 s46, s2, 0x20003')
    a(f's_add_u32 s{sOB}, s45, s46')
    a(f's_lshr_b32 s{sCB}, s2, 5')
    a(f's_lshl_b32 s59, s{sOB}, {6+FSH}')
    a(f's_add_u32 s59, s59, {FOA_OFF}')
    a(f's_mov_b32 s{sPOL}, 0')
    def dmaA(): return [f's_mov_b32 m0, s{sDA}', f's_sub_u32 s{sCA}, s{sCA}, 1', f'buffer_load_dwordx4 v{vWo}, s[{sWA}:{sWA+3}], s{sSA} offen lds',
                        f's_add_u32 s{sSA}, s{sSA}, 8192', f's_add_u32 s{sDA}, s{sDA}, 1024']
    def dmaB(): return [f's_mov_b32 m0, s{sDB}', f's_sub_u32 s{sCB2}, s{sCB2}, 1', f'buffer_load_dwordx4 v{vWo}, s[{sWB}:{sWB+3}], s{sSB} offen lds',
                        f's_add_u32 s{sSB}, s{sSB}, 8192', f's_add_u32 s{sDB}, s{sDB}, 1024']
    def foa_hook(n=0):
        a(f's_waitcnt vmcnt({n})')
        flag_store(a, sFO)
    def foa_poll():
        lab = a.newlabel(name + '_fp')
        a(f's_cmp_lg_u32 s{sWAVE}, 0')
        a(f's_cbranch_scc1 {lab}')
        a(f'buffer_load_dwordx2 {v(vFL,2)}, v{vL8}, {WS}, s59 offen sc1')
        a(f's_mov_b32 s{sPOL}, 1')
        a.label(lab)
    tails = [name+'_btail0', name+'_btail1']
    if opt.get('prio',1): a('s_setprio 1')
    for i in range(8):
        a(f's_cmp_le_u32 s{sN}, {i+1}')
        a(f's_cbranch_scc1 {tails[i&1]}' if i > 0 else f's_cbranch_scc1 {name}_btail_first')
        if i > 0: a('s_waitcnt lgkmcnt(0)')
        up = (i-1) & 1
        mf = [mm(S[(i+1)&1], KA[(i+1)&1], QB, CF if i+1 == 8 else '0'),
              mm(O[0], VA[up], P[up], '0' if i == 1 else O[0]), mm(O[0], VA[up]+4, P[up]+4, O[0])]
        if i == 0: mf[1] = mf[2] = None
        sl = [[vB(i,0), vB(i,1)] + ([kB(i+2)] if i+2 <= 8 else []), [], []]
        if i < 4: sl[1] = dmaA(); sl[2] = dmaA()
        elif i < 6: sl[1] = dmaB(); sl[2] = dmaB()
        unit(a, S[i&1], P[i&1], mf, sl)
        a(f'v_sub_u32 v{vVa}, v{vVa}, v{vVs}')
        if i == 3:
            if opt.get('tdbg'): st.mark(7)
            foa_hook(8)
            if opt.get('tdbg'): st.mark(8)
            if opt.get('prio',1): a('s_setprio 0')
    a(f's_branch {tails[0]}')
    a.label(name + '_btail_first')
    a(vB(0,0)); a(vB(0,1))
    unit(a, S[0], P[0], [None, None, None], [[],[],[]])
    a('s_waitcnt lgkmcnt(0)')
    a(mm(O[0], VA[0], P[0], '0'))
    a(mm(O[0], VA[0]+4, P[0]+4, O[0]))
    a(f's_branch {name}_bdone')
    for par in (0,1):
        a.label(tails[par])
        up = par ^ 1
        a('s_waitcnt lgkmcnt(0)')
        a(vB(par,0)); a(vB(par,1))
        lab = a.newlabel(name + '_z')
        if par == 1:
            a(f's_cmp_lg_u32 s{sN}, 2')
            a(f's_cbranch_scc1 {lab}')
            for r in range(16): a(f'v_mov_b32 v{O[0]+r}, 0')
            a('s_nop 1')
            a.label(lab)
        mf = [None, mm(O[0], VA[up], P[up], O[0]), mm(O[0], VA[up]+4, P[up]+4, O[0])]
        unit(a, S[par], P[par], mf, [[],[],[]])
        a('s_waitcnt lgkmcnt(0)')
        a(mm(O[0], VA[par], P[par], O[0]))
        a(mm(O[0], VA[par]+4, P[par]+4, O[0]))
        if par == 0: a(f's_branch {name}_bdone')
    a.label(name+'_bdone')
    a(f's_cmp_gt_u32 s{sN}, 4')
    a(f's_cbranch_scc1 {name}_bdone2')
    foa_hook()
    a.label(name+'_bdone2')
    if opt.get('prio',1): a('s_setprio 0')
    for cnt, mac in ((sCA, dmaA), (sCB2, dmaB)):
        top = a.newlabel(name + '_lo'); done = a.newlabel(name + '_ld')
        a.label(top)
        a(f's_cmp_eq_u32 s{cnt}, 0')
        a(f's_cbranch_scc1 {done}')
        emit(mac())
        a(f's_branch {top}')
        a.label(done)
    st.mark(10)
    if opt.get('tdbg'): st.mark(1)
    a(f'v_sub_f32 v{TT}, 1.0, v{vG}')
    a(f'v_cvt_pk_bf16_f32 v{TT}, v{TT}, v{TT}')
    a(f'v_lshlrev_b32 v{TT}, 16, v{TT}')
    a('s_nop 7')
    a('s_nop 1')
    a(f'v_rcp_f32 v{TT+1}, v{O[0]+8}')
    a('s_nop 0')
    a(f'v_mul_f32 v{TT}, v{TT}, v{TT+1}')
    for r in range(8): a(f'v_mul_f32 v{O[0]+r}, v{O[0]+r}, v{TT}')
    for r in range(4): a(f'v_cvt_pk_bf16_f32 v{PK+r}, v{O[0]+2*r}, v{O[0]+2*r+1}')
    a(f's_add_u32 s45, s{sOO}, {64*32*1024}')
    a(f's_add_u32 s{sFO}, s{sFO}, {FOB_OFF-FOA_OFF}')
    a(f'buffer_store_dwordx4 {v(PK,4)}, v{vL16}, {WS}, s45 offen sc1')
    if g.upto == 'B':
        a('s_waitcnt vmcnt(0)'); st.flush(sWAVE, sWS, WS_USED); a('s_endpgm'); return
    sK4 = sKH
    a(f's_and_b32 s{sTT}, s{sWAVE}, 1')
    a(f's_lshr_b32 s{sK4}, s{sWAVE}, 1')
    a(f's_cmp_lg_u32 s{sWAVE}, 0')
    a(f's_cbranch_scc1 {name}_t0')
    a(f'buffer_load_dwordx2 {v(vFL,2)}, v{vL8}, {WS}, s59 offen sc1')
    a.label(name + '_t0')
    a(f's_lshl_b32 s45, s{sOB}, 1')
    a(f's_add_u32 s45, s45, s{sTT}')
    a('s_lshl_b32 s45, s45, 5')
    a(f's_lshl_b32 s46, s{sK4}, 3')
    a('s_add_u32 s45, s45, s46')
    a('s_lshl_b32 s45, s45, 10')
    a(f's_add_u32 s{sOO}, s45, {OF_OFF}')
    a('v_bfe_u32 v4, v1, 2, 2')
    a('v_and_b32 v5, 3, v1')
    a('v_bfe_u32 v6, v1, 4, 1')
    a('v_lshlrev_b32 v6, 1, v6')
    a('v_lshrrev_b32 v7, 1, v5')
    a('v_add_u32 v6, v6, v7')
    a(f's_and_b32 s45, s{sK4}, 1')
    a('s_lshl_b32 s45, s45, 1')
    a(f's_and_b32 s46, s{sK4}, 2')
    a('s_lshl_b32 s46, s46, 1')
    a('s_or_b32 s45, s45, s46')
    a('v_xor_b32 v6, s45, v6')
    a('v_bfe_u32 v7, v4, 1, 1')
    a('v_lshlrev_b32 v7, 2, v7')
    a('v_xor_b32 v6, v6, v7')
    a('v_lshlrev_b32 v6, 4, v6')
    a('v_and_b32 v5, 1, v5')
    a('v_lshl_add_u32 v6, v5, 3, v6')
    a('v_lshrrev_b32 v5, 5, v1')
    a('v_lshl_add_u32 v4, v5, 2, v4')
    a('v_lshl_add_u32 v6, v4, 7, v6')
    a(f's_lshl_b32 s45, s{sK4}, 14')
    a(f's_add_u32 s46, s45, {WA0}')
    a('v_add_u32 v8, s46, v6')
    a('v_xor_b32 v9, 64, v8')
    a(f's_cmp_lt_u32 s{sK4}, 2')
    a(f's_cselect_b32 s46, {WB0}, 0')
    a(f's_and_b32 s45, s45, {16384}')
    a('s_add_u32 s46, s46, s45')
    a('v_add_u32 v10, s46, v6')
    a('v_xor_b32 v11, 64, v10')
    OF_ = 176; WF = 16; ACC = [96, 112]
    def o_loads(br):
        for i in range(8):
            if i % 4 == 0: a(f's_add_u32 s45, s{sOO}, {br*64*32*1024 + i*1024}')
            a(f'buffer_load_dwordx4 {v(OF_+4*i,4)}, v{vL16}, {WS}, s45 offen offset:{(i%4)*1024} sc1')
    def wo_reads(va):
        for i in range(8):
            for ct in range(2):
                a(f'ds_read_b64_tr_b16 {v(WF+8*i+4*ct,2)}, v{va+ct} offset:{i*2048}')
                a(f'ds_read_b64_tr_b16 {v(WF+8*i+4*ct+2,2)}, v{va+ct} offset:{i*2048+1024}')
    def part(first, base):
        for i in range(8):
            a(f's_waitcnt vmcnt({base + 7 - i})')
            for ct in range(2):
                a(mm(ACC[ct], WF+8*i+4*ct, OF_+4*i, '0' if (first and i == 0) else ACC[ct]))
    if opt.get('tdbg'): st.mark(2)
    a('s_waitcnt vmcnt(0) lgkmcnt(0)')
    flag_store(a, sFO)
    if opt.get('tdbg'): st.mark(3)
    a(f's_cmp_lg_u32 s{sWAVE}, 0')
    a(f's_cbranch_scc1 {name}_t1')
    emit_poll(a, name+'_foa', vL8, 59)
    a.label(name + '_t1')
    a('s_barrier')
    st.mark(11)
    o_loads(0)
    wo_dma(1, 16, 16, WB1)
    wo_reads(8)
    if opt.get('tdbg'): st.mark(4)
    a('s_waitcnt lgkmcnt(0)')
    part(True, 4)
    if opt.get('tdbg'): st.mark(6)
    a(f's_add_u32 s59, s59, {FOB_OFF-FOA_OFF}')
    a(f's_cmp_lg_u32 s{sWAVE}, 0')
    a(f's_cbranch_scc1 {name}_t3')
    emit_poll(a, name+'_fob', vL8, 59, first_issued=False)
    a.label(name + '_t3')
    a('s_waitcnt vmcnt(0)')
    a('s_barrier')
    st.mark(12)
    o_loads(1)
    wo_reads(10)
    a('s_waitcnt lgkmcnt(0)')
    part(False, 0)
    st.mark(13)
    a('s_nop 7')
    for y in (1,2,3):
        a(f's_xor_b32 s45, s{sK4}, {y}')
        a(f's_lshl_b32 s46, s{sTT}, 2')
        a('s_add_u32 s45, s45, s46')
        a('s_mul_i32 s45, s45, 6144')
        a(f's_add_u32 s45, s45, {RS + (y-1)*2048}')
        a(f'v_add_u32 v4, s45, v{vL16}')
        a(f'ds_write_b128 v4, {v(ACC[0]+8*y,4)}')
        a(f'ds_write_b128 v4, {v(ACC[0]+8*y+4,4)} offset:1024')
    a(f's_lshl_b32 s46, s{sTT}, 2')
    a(f's_add_u32 s45, s{sK4}, s46')
    a('s_mul_i32 s45, s45, 6144')
    a(f's_add_u32 s45, s45, {RS}')
    a(f'v_add_u32 v4, s45, v{vL16}')
    srd(a, sT, 18, 2048*1024)
    a('v_and_b32 v6, 31, v1')
    a(f's_lshl_b32 s45, s{sOB}, 6')
    a(f's_lshl_b32 s46, s{sTT}, 5')
    a('s_add_u32 s45, s45, s46')
    a('v_add_u32 v6, s45, v6')
    a('v_lshlrev_b32 v6, 10, v6')
    a('v_lshrrev_b32 v5, 5, v1')
    a('v_lshl_add_u32 v6, v5, 4, v6')
    a(f's_lshl_b32 s45, s{sCB}, 7')
    a(f's_lshl_b32 s46, s{sK4}, 5')
    a('s_add_u32 s45, s45, s46')
    a('s_waitcnt lgkmcnt(0)')
    a('s_barrier')
    for i in range(3):
        a(f'ds_read_b128 {v(16+8*i,4)}, v4 offset:{i*2048}')
        a(f'ds_read_b128 {v(16+8*i+4,4)}, v4 offset:{i*2048+1024}')
    for i in range(3):
        a(f's_waitcnt lgkmcnt({4-2*i})')
        for r in range(8): a(f'v_add_f32 v{ACC[0]+r}, v{ACC[0]+r}, v{16+8*i+r}')
    for r in range(4): a(f'v_cvt_pk_bf16_f32 v{48+r}, v{ACC[0]+2*r}, v{ACC[0]+2*r+1}')
    a('s_nop 1')
    a('v_permlane32_swap_b32 v48, v50')
    a('v_permlane32_swap_b32 v49, v51')
    a(f'buffer_store_dwordx4 v[48:51], v6, s[{sT}:{sT+3}], s45 offen')
    a(f's_or_b32 s45, s2, s{sWAVE}')
    a('s_cmp_lg_u32 s45, 0')
    a(f's_cbranch_scc1 {name}_t5')
    a(f's_mov_b32 s45, {FX_OFF}')
    flag_store(a, 45)
    a.label(name + '_t5')
    if g.stamp:
        a('s_waitcnt vmcnt(0)')
        st.flush(sWAVE, sWS, WS_USED)
```
